```python
import torch

def _softmax(x, axis=-1):
    return torch.softmax(x, dim=axis)
def _gelu(x):
    return torch.nn.functional.gelu(x, approximate="tanh")
def _silu(x):
    return torch.nn.functional.silu(x)
def _sigmoid(x):
    return torch.sigmoid(x)
def _layernorm(x, axis=-1, eps=1e-5):
    m = x.mean(dim=axis, keepdim=True)
    v = x.var(dim=axis, keepdim=True, unbiased=False)
    return (x - m) / torch.sqrt(v + eps)
def _scatter_add(tgt, idx, src, axis=0):
    return tgt.clone().index_add_(axis, idx, src)
def _segment_sum(src, seg, n):
    out = torch.zeros((n,) + src.shape[1:], dtype=src.dtype)
    return out.index_add_(0, seg, src)
def _pad(x, pw):
    flat = tuple(v for pair in reversed(pw) for v in pair)
    return torch.nn.functional.pad(x, flat)

kernel_name = 'standalone__mha_softmax__decode'

def setup_inputs():

    _w = (lambda a: (lambda t: t.to(torch.bfloat16) if t.is_floating_point() else t)(torch.as_tensor(a)))
    B, H, Sq, Sk, D = 1, 32, 1, 32768, 192
    return {
        "q": _w((lambda *s: torch.randn(*s, dtype=torch.bfloat16) * 0.8)(B, H, Sq, D)),
        "k": _w((lambda *s: torch.randn(*s, dtype=torch.bfloat16) * 0.8)(B, H, Sk, D)),
        "v": _w((lambda *s: torch.randn(*s, dtype=torch.bfloat16) * 0.05)(B, H, Sk, D)),
    }

def reference(q, k, v):
    scale = q.shape[-1] ** -0.5
    scores = torch.einsum("bhqd,bhkd->bhqk", q, k) * scale
    p = _softmax(scores, axis=-1)
    return torch.einsum("bhqk,bhkd->bhqd", p, v)
```

```python
import sys, math

HEADER = """; Kernarg layout for this problem (48 bytes, ptrs only, base s[0:1]):
"""
NAME = "standalone__mha_softmax__decode_kernel"
H, SK, D = 32, 32768, 192
ROWB = D * 2
HEADB = SK * ROWB
import struct
def f32bits(x):
    return struct.unpack("<I", struct.pack("<f", x))[0]
CSCALE = f32bits((D ** -0.5) * math.log2(math.e))


class Asm:
    def __init__(self):
        self.lines = []
    def __call__(self, s):
        self.lines.append("    " + s)
    def label(self, s):
        self.lines.append(s + ":")
    def raw(self, s):
        self.lines.append(s)
    def nop(self, n):
        while n > 0:
            k = min(n, 16)
            self("s_nop %d" % (k - 1))
            n -= k
    def text(self):
        return "\n".join(self.lines) + "\n"


def merge_math(a, N, vm, vl, vo, nhalf, vM, vL, vO, vt, sC):
    a("v_max_f32 v%d, v%d, v%d" % (vM, vm(0), vm(1)))
    i = 2
    while i < N:
        if i + 1 < N:
            a("v_max3_f32 v%d, v%d, v%d, v%d" % (vM, vM, vm(i), vm(i + 1)))
            i += 2
        else:
            a("v_max_f32 v%d, v%d, v%d" % (vM, vM, vm(i)))
            i += 1
    vf = lambda i: vt + i
    for i in range(N):
        a("v_sub_f32 v%d, v%d, v%d" % (vf(i), vm(i), vM))
    for i in range(N):
        a("v_mul_f32 v%d, s%d, v%d" % (vf(i), sC, vf(i)))
    for i in range(N):
        a("v_exp_f32 v%d, v%d" % (vf(i), vf(i)))
    a.nop(1)
    a("v_mul_f32 v%d, v%d, v%d" % (vL, vf(0), vl(0)))
    for i in range(1, N):
        a("v_fmac_f32 v%d, v%d, v%d" % (vL, vf(i), vl(i)))
    first = True
    for i in range(N):
        for h in range(nhalf):
            for r in range(4):
                if first:
                    a("v_mul_f32 v%d, v%d, v%d" % (vO + r, vf(i), vo(i, h) + r))
                else:
                    a("v_fmac_f32 v%d, v%d, v%d" % (vO + r, vf(i), vo(i, h) + r))
            first = False


def gen(NW=8, WGS=256, G=2, R=3, pattern="B", policy="nt", hmap="hi", lds=0,
        two_kernel=False, stamps=False, kfirst=False):
    SPL = WGS // H
    n = 3 * G
    TILEK = 8 * G
    TILEB = TILEK * ROWB
    tiles_head = SK // TILEK
    NT = tiles_head // (SPL * NW)
    assert NT * SPL * NW == tiles_head
    assert (2 * R - 1) * n <= 63
    assert NT >= R
    nloop, rem = divmod(NT - R, R)
    pol = (" " + policy) if policy else ""
    ldsneed = NW * 1536 + NW * 8 + 256
    ldsz = max(lds, ldsneed)

    sH, sJ, sW = 40, 41, 42
    sNext, sCnt, sC, sM, sT0, sT1 = 43, 44, 45, 46, 47, 48
    sStamp = 50
    SK_, SV_, SQ_, SO_, SW_, SD_ = 16, 20, 24, 28, 32, 36
    vOff, vOff2, vQoff, vLane = 1, 2, 3, 4
    vM, vMC, vL, vT, vF = 5, 6, 7, 8, 9
    vMask = 10
    vS = 14
    vQ = 20
    vAcc = 32
    vA = 44
    vD = 44 + 4 * G
    vD = (vD + 3) // 4 * 4
    def vK(r, g, c): return vD + r * 2 * 12 * G + (g * 3 + c) * 4
    def vV(r, g, c): return vD + r * 2 * 12 * G + 12 * G + (g * 3 + c) * 4
    vEnd = vD + R * 2 * 12 * G
    NM = max(NW, SPL)
    vEndMerge = 44 + NM * 8 + NM * 2 + NM + 8 + 8
    nvgpr = max(vEnd, vEndMerge)
    assert nvgpr <= 512

    a = Asm()
    a.raw(HEADER.rstrip())
    if two_kernel:
        a.raw("; @launch kernel=%s grid=(%d,1,1) block=(%d,1,1) lds=%d" % (NAME, WGS, NW * 64, ldsz))
        a.raw("; @launch kernel=combine_kernel grid=(%d,1,1) block=(64,1,1) lds=0" % H)
    else:
        a.raw("; @launch grid=(%d,1,1) block=(%d,1,1) lds=%d" % (WGS, NW * 64, ldsz))
    a.raw('.amdgcn_target "amdgcn-amd-amdhsa--gfx950"')
    a.raw(".text")
    a.raw(".globl %s" % NAME)
    a.raw(".p2align 8")
    a.raw(".type %s,@function" % NAME)
    a.label(NAME)
    a("s_cmp_ge_u32 s2, %d" % WGS)
    a("s_cbranch_scc1 L_end")
    a("s_load_dwordx8 s[4:11], s[0:1], 0")
    a("s_load_dwordx4 s[12:15], s[0:1], 32")
    if stamps:
        a("s_memrealtime s[%d:%d]" % (sStamp, sStamp + 1))
    a("v_lshrrev_b32 v%d, 6, v0" % vT)
    a("v_and_b32 v%d, 63, v0" % vLane)
    a("v_readfirstlane_b32 s%d, v%d" % (sW, vT))
    a("v_lshrrev_b32 v%d, 3, v%d" % (vF, vLane))
    a("v_and_b32 v%d, 7, v%d" % (vM, vLane))
    a("v_mul_u32_u24 v%d, %d, v%d" % (vF, ROWB, vF))
    a("v_lshlrev_b32 v%d, 4, v%d" % (vQoff, vM))
    a("v_add_u32 v%d, v%d, v%d" % (vOff, vQoff, vF))
    if G == 4:
        a("v_add_u32 v%d, %d, v%d" % (vOff2, 2 * 8 * ROWB, vOff))
    lg = int(math.log2(SPL))
    if hmap == "hi":
        a("s_lshr_b32 s%d, s2, %d" % (sH, lg))
        a("s_and_b32 s%d, s2, %d" % (sJ, SPL - 1))
    else:
        a("s_and_b32 s%d, s2, %d" % (sH, H - 1))
        a("s_lshr_b32 s%d, s2, 5" % sJ)
    if pattern == "A":
        a("s_mul_i32 s%d, s%d, %d" % (sT0, sJ, NW))
        a("s_add_u32 s%d, s%d, s%d" % (sT0, sT0, sW))
        a("s_mul_i32 s%d, s%d, %d" % (sNext, sT0, NT * TILEB))
        stride = TILEB
    elif pattern == "B":
        a("s_mul_i32 s%d, s%d, %d" % (sT0, sJ, NW * NT))
        a("s_add_u32 s%d, s%d, s%d" % (sT0, sT0, sW))
        a("s_mul_i32 s%d, s%d, %d" % (sNext, sT0, TILEB))
        stride = TILEB * NW
    else:
        a("s_mul_i32 s%d, s%d, %d" % (sT0, sJ, NW))
        a("s_add_u32 s%d, s%d, s%d" % (sT0, sT0, sW))
        a("s_mul_i32 s%d, s%d, %d" % (sNext, sT0, TILEB))
        stride = TILEB * NW * SPL
    a("s_mul_i32 s%d, s%d, %d" % (sT0, sH, HEADB))
    a("s_mul_i32 s%d, s%d, %d" % (sT1, sH, ROWB))
    a("s_mov_b32 s%d, %d" % (SK_ + 2, HEADB))
    a("s_mov_b32 s%d, 0x20000" % (SK_ + 3))
    a("s_mov_b32 s%d, %d" % (SV_ + 2, HEADB))
    a("s_mov_b32 s%d, 0x20000" % (SV_ + 3))
    a("s_mov_b32 s%d, %d" % (SQ_ + 2, ROWB))
    a("s_mov_b32 s%d, 0x20000" % (SQ_ + 3))
    a("s_waitcnt lgkmcnt(0)")
    a("s_add_u32 s%d, s6, s%d" % (SK_, sT0))
    a("s_addc_u32 s%d, s7, 0" % (SK_ + 1))
    a("s_add_u32 s%d, s8, s%d" % (SV_, sT0))
    a("s_addc_u32 s%d, s9, 0" % (SV_ + 1))
    a("s_add_u32 s%d, s4, s%d" % (SQ_, sT1))
    a("s_addc_u32 s%d, s5, 0" % (SQ_ + 1))

    def loads(which, r):
        srd = SK_ if which == "K" else SV_
        f = vK if which == "K" else vV
        for g in range(G):
            vo = vOff2 if g >= 2 else vOff
            for c in range(3):
                off = (g % 2) * 8 * ROWB + c * 128
                reg = f(r, g, c)
                a("buffer_load_dwordx4 v[%d:%d], v%d, s[%d:%d], s%d offen offset:%d%s"
                  % (reg, reg + 3, vo, srd, srd + 3, sNext, off, pol))

    for c in range(3):
        a("buffer_load_dwordx4 v[%d:%d], v%d, s[%d:%d], 0 offen offset:%d"
          % (vQ + 4 * c, vQ + 4 * c + 3, vQoff, SQ_, SQ_ + 3, c * 128))
    for r in range(R):
        loads("K", r)
        loads("V", r)
        a("s_add_u32 s%d, s%d, %d" % (sNext, sNext, stride))
    a("s_mov_b32 s%d, 0x%08x" % (sC, CSCALE))
    a("s_mov_b32 s%d, s10" % SO_)
    a("s_mov_b32 s%d, s11" % (SO_ + 1))
    a("s_mov_b32 s%d, %d" % (SO_ + 2, H * ROWB))
    a("s_mov_b32 s%d, 0x20000" % (SO_ + 3))
    a("s_mov_b32 s%d, s14" % SW_)
    a("s_mov_b32 s%d, s15" % (SW_ + 1))
    a("s_mov_b32 s%d, %d" % (SW_ + 2, WGS * 1024 + (WGS * 64 if stamps else 0)))
    a("s_mov_b32 s%d, 0x20000" % (SW_ + 3))
    a("s_mov_b32 s%d, s12" % SD_)
    a("s_mov_b32 s%d, s13" % (SD_ + 1))
    a("s_mov_b32 s%d, 256" % (SD_ + 2))
    a("s_mov_b32 s%d, 0x20000" % (SD_ + 3))
    a("v_and_b32 v%d, 1, v%d" % (vT, vM))
    a("v_lshlrev_b32 v%d, 4, v%d" % (vT, vT))
    a("v_mov_b32 v%d, 0xffff" % vF)
    a("v_lshlrev_b32 v%d, v%d, v%d" % (vF, vT, vF))
    a("v_lshrrev_b32 v%d, 1, v%d" % (vT, vM))
    for r in range(4):
        a("v_cmp_eq_u32 vcc, %d, v%d" % (r, vT))
        a.nop(2)
        a("v_cndmask_b32 v%d, 0, v%d, vcc" % (vMask + r, vF))
    a("v_mov_b32 v%d, 0xff800000" % vM)
    a("v_mov_b32 v%d, 0" % vMC)
    a("v_mov_b32 v%d, 0" % vL)
    for i in range(12):
        a("v_mov_b32 v%d, 0" % (vAcc + i))

    rare = []
    def tile(r, with_loads, wk, wv):
        tag = len(rare)
        a("s_waitcnt vmcnt(%d)" % wk)
        for c in range(3):
            for dw in range(4):
                for g in range(G):
                    src2 = "0" if (c == 0 and dw == 0) else "v%d" % (vS + g)
                    a("v_dot2_f32_bf16 v%d, v%d, v%d, %s" % (vS + g, vK(r, g, c) + dw, vQ + 4 * c + dw, src2))
        if with_loads:
            loads("K", r)
        else:
            a.nop(3)
        for mod in ("quad_perm:[1,0,3,2]", "quad_perm:[2,3,0,1]", "row_half_mirror"):
            for g in range(G):
                a("v_add_f32_dpp v%d, v%d, v%d %s row_mask:0xf bank_mask:0xf" % (vS + g, vS + g, vS + g, mod))
            if mod != "row_half_mirror":
                a.nop(max(0, 2 - (G - 1)))
        if G == 1:
            tm = vS
        elif G == 2:
            a("v_max_f32 v%d, v%d, v%d" % (vT, vS, vS + 1)); tm = vT
        else:
            a("v_max3_f32 v%d, v%d, v%d, v%d" % (vT, vS, vS + 1, vS + 2))
            a("v_max_f32 v%d, v%d, v%d" % (vT, vT, vS + 3)); tm = vT
        a("v_cmp_gt_f32 vcc, v%d, v%d" % (tm, vM))
        a("s_cbranch_vccnz L_rare%d" % tag)
        a.label("L_back%d" % tag)
        rare.append(tm)
        for g in range(G):
            a("v_fma_f32 v%d, v%d, s%d, -v%d" % (vS + g, vS + g, sC, vMC))
        for g in range(G):
            a("v_exp_f32 v%d, v%d" % (vS + g, vS + g))
        if G == 1:
            a.nop(1)
        for g in range(G):
            a("v_add_f32 v%d, v%d, v%d" % (vL, vL, vS + g))
        for g in range(G):
            a("v_cvt_pk_bf16_f32 v%d, v%d, v%d" % (vS + g, vS + g, vS + g))
        for g in range(G):
            for q in range(4):
                a("v_and_b32 v%d, v%d, v%d" % (vA + 4 * g + q, vS + g, vMask + q))
        a("s_waitcnt vmcnt(%d)" % wv)
        a.nop(1)
        for g in range(G):
            for c in range(3):
                a("v_mfma_f32_16x16x32_bf16 v[%d:%d], v[%d:%d], v[%d:%d], v[%d:%d]"
                  % (vAcc + 4 * c, vAcc + 4 * c + 3, vA + 4 * g, vA + 4 * g + 3,
                     vV(r, g, c), vV(r, g, c) + 3, vAcc + 4 * c, vAcc + 4 * c + 3))
        if with_loads:
            loads("V", r)
            a("s_add_u32 s%d, s%d, %d" % (sNext, sNext, stride))

    full = (2 * R - 1) * n
    if nloop > 0:
        a("s_mov_b32 s%d, %d" % (sCnt, nloop))
        a.raw(".p2align 6")
        a.label("L_loop")
        for r in range(R):
            tile(r, True, full, full)
        a("s_sub_u32 s%d, s%d, 1" % (sCnt, sCnt))
        a("s_cmp_lg_u32 s%d, 0" % sCnt)
        a("s_cbranch_scc1 L_loop")
    for r in range(rem):
        tile(r, True, full, full)
    for i in range(R):
        r = (rem + i) % R
        left = R - 1 - i
        tile(r, False, (2 * left + 1) * n, 2 * left * n)

    a("v_add_f32_dpp v%d, v%d, v%d row_mirror row_mask:0xf bank_mask:0xf" % (vL, vL, vL))
    a("v_lshrrev_b32 v%d, 5, v%d" % (vT, vLane))
    a("v_mul_u32_u24 v%d, 768, v%d" % (vT, vT))
    a("v_add_f32_dpp v%d, v%d, v%d row_bcast:15 row_mask:0xa bank_mask:0xf" % (vL, vL, vL))
    a("v_and_b32 v%d, 7, v%d" % (vF, vLane))
    a("v_lshl_add_u32 v%d, v%d, 5, v%d" % (vT, vF, vT))
    a("v_add_f32_dpp v%d, v%d, v%d row_bcast:31 row_mask:0xc bank_mask:0xf" % (vL, vL, vL))
    a("v_and_b32 v%d, 16, v%d" % (vF, vLane))
    a("v_add_u32 v%d, v%d, v%d" % (vT, vT, vF))
    a("s_mul_i32 s%d, s%d, 1536" % (sT0, sW))
    a("v_add_u32 v%d, s%d, v%d" % (vT, sT0, vT))
    a("s_lshl_b32 s%d, s%d, 3" % (sT1, sW))
    a("s_add_u32 s%d, s%d, %d" % (sT1, sT1, NW * 1536))
    a("v_mov_b32 v%d, s%d" % (vF, sT1))
    a("v_mov_b32 v%d, v%d" % (vS, vM))
    a("v_mov_b32 v%d, v%d" % (vS + 1, vL))
    a.nop(8)
    a("s_mov_b32 exec_lo, 0x00ff00ff")
    a("s_mov_b32 exec_hi, 0xff00ff00")
    for c in range(3):
        a("ds_write_b128 v%d, v[%d:%d] offset:%d" % (vT, vAcc + 4 * c, vAcc + 4 * c + 3, 256 * c))
    a("s_mov_b32 exec_lo, 0")
    a("s_mov_b32 exec_hi, 0x80000000")
    a("ds_write_b64 v%d, v[%d:%d]" % (vF, vS, vS + 1))
    a("s_mov_b64 exec, -1")
    a("s_waitcnt lgkmcnt(0)")
    a("s_barrier")
    a("s_cmp_lg_u32 s%d, 0" % sW)
    a("s_cbranch_scc1 L_end")
    mO = 44
    mML = mO + NM * 8
    mT = mML + NM * 2
    mR = (mT + NM + 3) // 4 * 4
    mM, mL = mR + 4, mR + 5
    a("v_lshlrev_b32 v%d, 4, v%d" % (vT, vLane))
    a("v_mov_b32 v%d, %d" % (vF, NW * 1536))
    for i in range(NW // 2):
        a("ds_read_b128 v[%d:%d], v%d offset:%d" % (mML + 4 * i, mML + 4 * i + 3, vF, 16 * i))
    for i in range(NW * 2):
        a("ds_read_b128 v[%d:%d], v%d offset:%d" % (mO + 4 * i, mO + 4 * i + 3, vT, 768 * i))
    a("s_waitcnt lgkmcnt(0)")
    merge_math(a, NW, lambda i: mML + 2 * i, lambda i: mML + 2 * i + 1,
               lambda i, h: mO + 8 * i + 4 * h, 2, mM, mL, mR, mT, sC)
    a("v_cmp_eq_u32 vcc, 48, v%d" % vLane)
    a("s_mul_i32 s%d, s%d, %d" % (sT0, sH, SPL))
    a("s_add_u32 s%d, s%d, s%d" % (sT1, sT0, sJ))
    a("s_lshl_b32 s%d, s%d, 10" % (sT1, sT1))
    a("v_cndmask_b32 v%d, v%d, v%d, vcc" % (mR, mR, mM))
    a("v_cndmask_b32 v%d, v%d, v%d, vcc" % (mR + 1, mR + 1, mL))
    a("s_mov_b32 exec_lo, -1")
    a("s_mov_b32 exec_hi, 0x1ffff")
    a("buffer_store_dwordx4 v[%d:%d], v%d, s[%d:%d], s%d offen%s"
      % (mR, mR + 3, vT, SW_, SW_ + 3, sT1, "" if two_kernel else " sc1"))
    if stamps:
        a("s_memrealtime s[%d:%d]" % (sStamp + 2, sStamp + 3))
        a("s_getreg_b32 s%d, hwreg(HW_REG_XCC_ID)" % sM)
        a("s_getreg_b32 s%d, hwreg(HW_REG_HW_ID)" % sCnt)
        a("s_waitcnt lgkmcnt(0)")
        a("v_mov_b32 v%d, s%d" % (vQ, sStamp))
        a("v_mov_b32 v%d, s%d" % (vQ + 1, sStamp + 2))
        a("v_mov_b32 v%d, s%d" % (vQ + 2, sM))
        a("v_mov_b32 v%d, s%d" % (vQ + 3, sCnt))
        a("s_lshl_b32 s%d, s2, 4" % sM)
        a("s_add_u32 s%d, s%d, %d" % (sM, sM, WGS * 1024))
        a("s_mov_b64 exec, 1")
        a("buffer_store_dwordx4 v[%d:%d], off, s[%d:%d], s%d" % (vQ, vQ + 3, SW_, SW_ + 3, sM))
    if not two_kernel:
        a("s_mov_b64 exec, 1")
        a("v_mov_b32 v%d, 1" % vF)
        a("s_lshl_b32 s%d, s%d, 3" % (sT1, sH))
        a("s_waitcnt vmcnt(0)")
        a("buffer_atomic_add v%d, off, s[%d:%d], s%d sc0" % (vF, SD_, SD_ + 3, sT1))
        a("s_waitcnt vmcnt(0)")
        a("v_readfirstlane_b32 s%d, v%d" % (sT1, vF))
        a("s_mov_b64 exec, -1")
        a.nop(4)
        a("s_cmp_lg_u32 s%d, %d" % (sT1, SPL - 1))
        a("s_cbranch_scc1 L_end")
        final(a, SPL, sT0, sT1, sH, sC, SW_, SO_, vT, vF, vLane, mO, mML, mT, mR, mM, mL, " sc1")
    a.label("L_end")
    a("s_endpgm")

    for tag, tm in enumerate(rare):
        a.label("L_rare%d" % tag)
        a("v_mov_b32 v%d, v%d" % (vF, tm))
        a.nop(2)
        a("v_max_f32_dpp v%d, v%d, v%d row_mirror row_mask:0xf bank_mask:0xf" % (vF, vF, vF))
        a.nop(2)
        a("v_max_f32_dpp v%d, v%d, v%d row_bcast:15 row_mask:0xa bank_mask:0xf" % (vF, vF, vF))
        a.nop(2)
        a("v_max_f32_dpp v%d, v%d, v%d row_bcast:31 row_mask:0xc bank_mask:0xf" % (vF, vF, vF))
        a.nop(2)
        a("v_readlane_b32 s%d, v%d, 63" % (sM, vF))
        a.nop(2)
        a("v_subrev_f32 v%d, s%d, v%d" % (vF, sM, vM))
        a("v_mov_b32 v%d, s%d" % (vM, sM))
        a("v_mul_f32 v%d, s%d, v%d" % (vF, sC, vF))
        a("v_mul_f32 v%d, s%d, v%d" % (vMC, sC, vM))
        a("v_exp_f32 v%d, v%d" % (vF, vF))
        a.nop(1)
        for i in range(12):
            a("v_mul_f32 v%d, v%d, v%d" % (vAcc + i, vF, vAcc + i))
        a("v_mul_f32 v%d, v%d, v%d" % (vL, vF, vL))
        a("s_branch L_back%d" % tag)

    if two_kernel:
        a.raw(".globl combine_kernel")
        a.raw(".p2align 8")
        a.raw(".type combine_kernel,@function")
        a.label("combine_kernel")
        a("s_cmp_ge_u32 s2, %d" % H)
        a("s_cbranch_scc1 L_end2")
        a("s_load_dwordx2 s[%d:%d], s[0:1], 24" % (SO_, SO_ + 1))
        a("s_load_dwordx2 s[%d:%d], s[0:1], 40" % (SW_, SW_ + 1))
        a("s_mov_b32 s%d, %d" % (SO_ + 2, H * ROWB))
        a("s_mov_b32 s%d, 0x20000" % (SO_ + 3))
        a("s_mov_b32 s%d, %d" % (SW_ + 2, WGS * 1024))
        a("s_mov_b32 s%d, 0x20000" % (SW_ + 3))
        a("s_mov_b32 s%d, 0x%08x" % (sC, CSCALE))
        a("s_mov_b32 s%d, s2" % sH)
        a("s_mul_i32 s%d, s%d, %d" % (sT0, sH, SPL))
        a("v_mov_b32 v%d, v0" % vLane)
        a("v_lshlrev_b32 v%d, 4, v0" % vT)
        a("s_waitcnt lgkmcnt(0)")
        final(a, SPL, sT0, sT1, sH, sC, SW_, SO_, vT, vF, vLane, mO, mML, mT, mR, mM, mL, "")
        a.label("L_end2")
        a("s_endpgm")

    a.raw('.section .rodata,"a"')
    def kd(name, nv):
        a.raw(".p2align 6")
        a.raw(".amdhsa_kernel %s" % name)
        a.raw("  .amdhsa_next_free_vgpr %d" % nv)
        a.raw("  .amdhsa_next_free_sgpr 64")
        a.raw("  .amdhsa_accum_offset %d" % min(256, (nv + 3) // 4 * 4))
        a.raw("  .amdhsa_group_segment_fixed_size 0")
        a.raw("  .amdhsa_kernarg_size 48")
        a.raw("  .amdhsa_user_sgpr_count 2")
        a.raw("  .amdhsa_user_sgpr_kernarg_segment_ptr 1")
        a.raw("  .amdhsa_system_sgpr_workgroup_id_x 1")
        a.raw(".end_amdhsa_kernel")
    assert nvgpr <= 256
    kd(NAME, nvgpr)
    if two_kernel:
        kd("combine_kernel", vEndMerge)
    return a.text()


def final(a, SPL, sT0, sT1, sH, sC, SW_, SO_, vT, vF, vLane, mO, mML, mT, mR, mM, mL, pol):
    a("s_lshl_b32 s%d, s%d, 10" % (sT0, sT0))
    for i in range(SPL):
        if i and i % 4 == 0:
            a("s_add_u32 s%d, s%d, 4096" % (sT0, sT0))
        a("buffer_load_dwordx2 v[%d:%d], off, s[%d:%d], s%d offset:%d%s"
          % (mML + 2 * i, mML + 2 * i + 1, SW_, SW_ + 3, sT0, (i % 4) * 1024 + 768, pol))
        a("buffer_load_dwordx4 v[%d:%d], v%d, s[%d:%d], s%d offen offset:%d%s"
          % (mO + 4 * i, mO + 4 * i + 3, vT, SW_, SW_ + 3, sT0, (i % 4) * 1024, pol))
    a("s_waitcnt vmcnt(0)")
    merge_math(a, SPL, lambda i: mML + 2 * i, lambda i: mML + 2 * i + 1,
               lambda i, h: mO + 4 * i, 1, mM, mL, mR, mT, sC)
    a("v_rcp_f32 v%d, v%d" % (mL, mL))
    a("v_lshlrev_b32 v%d, 3, v%d" % (vT, vLane))
    a("s_mul_i32 s%d, s%d, %d" % (sT1, sH, ROWB))
    for r in range(4):
        a("v_mul_f32 v%d, v%d, v%d" % (mR + r, mL, mR + r))
    a("v_cvt_pk_bf16_f32 v%d, v%d, v%d" % (mR, mR, mR + 1))
    a("v_cvt_pk_bf16_f32 v%d, v%d, v%d" % (mR + 1, mR + 2, mR + 3))
    a("s_mov_b32 exec_lo, -1")
    a("s_mov_b32 exec_hi, 0xffff")
    a("buffer_store_dwordx2 v[%d:%d], v%d, s[%d:%d], s%d offen" % (mR, mR + 1, vT, SO_, SO_ + 3, sT1))


if __name__ == "__main__":
    kw = {}
    out = sys.argv[1]
    for x in sys.argv[2:]:
        k, v = x.split("=")
        if v in ("True", "False"):
            v = v == "True"
        else:
            try:
                v = int(v)
            except ValueError:
                v = v.replace("+", " ")
        kw[k] = v
    open(out, "w").write(gen(**kw))
```

```python
import sys, math

HEADER = """; Kernarg layout for this problem (48 bytes, ptrs only, base s[0:1]):
"""
NAME = "standalone__mha_softmax__decode_kernel"
H, SK, D = 32, 32768, 192
ROWB = D * 2
HEADB = SK * ROWB
import struct
def f32bits(x):
    return struct.unpack("<I", struct.pack("<f", x))[0]
CSCALE = f32bits((D ** -0.5) * math.log2(math.e))


class Asm:
    def __init__(self):
        self.lines = []
    def __call__(self, s):
        self.lines.append("    " + s)
    def label(self, s):
        self.lines.append(s + ":")
    def raw(self, s):
        self.lines.append(s)
    def nop(self, n):
        while n > 0:
            k = min(n, 16)
            self("s_nop %d" % (k - 1))
            n -= k
    def text(self):
        return "\n".join(self.lines) + "\n"


def merge_math(a, N, vm, vl, vo, nhalf, vM, vL, vO, vt, sC):
    a("v_max_f32 v%d, v%d, v%d" % (vM, vm(0), vm(min(1, N - 1))))
    i = 2
    while i < N:
        if i + 1 < N:
            a("v_max3_f32 v%d, v%d, v%d, v%d" % (vM, vM, vm(i), vm(i + 1)))
            i += 2
        else:
            a("v_max_f32 v%d, v%d, v%d" % (vM, vM, vm(i)))
            i += 1
    vf = lambda i: vt + i
    for i in range(N):
        a("v_sub_f32 v%d, v%d, v%d" % (vf(i), vm(i), vM))
    for i in range(N):
        a("v_mul_f32 v%d, s%d, v%d" % (vf(i), sC, vf(i)))
    for i in range(N):
        a("v_exp_f32 v%d, v%d" % (vf(i), vf(i)))
    a.nop(1)
    a("v_mul_f32 v%d, v%d, v%d" % (vL, vf(0), vl(0)))
    for i in range(1, N):
        a("v_fmac_f32 v%d, v%d, v%d" % (vL, vf(i), vl(i)))
    first = True
    for i in range(N):
        for h in range(nhalf):
            for r in range(4):
                if first:
                    a("v_mul_f32 v%d, v%d, v%d" % (vO + r, vf(i), vo(i, h) + r))
                else:
                    a("v_fmac_f32 v%d, v%d, v%d" % (vO + r, vf(i), vo(i, h) + r))
            first = False


def gen(NW=8, WGS=256, G=2, R=3, pattern="B", policy="nt", hmap="hi", lds=0,
        two_kernel=False, stamps=False, S=0, req=1, cws=256, lat=False, init=True, dpat=0, skew=0, XB=0, skewk=7, ms=False):
    SPL = WGS // H
    n = 3 * G
    TILEK = 8 * G
    TILEB = TILEK * ROWB
    tiles_head = SK // TILEK
    NT = tiles_head // (SPL * NW)
    assert NT * SPL * NW == tiles_head
    assert (2 * R - 1) * n <= 63
    assert NT >= R
    dyn = S > 0
    if dyn:
        assert S % R == 0 and S >= 2 * R and S <= NT
        NTs = S
        pool = tiles_head - S * SPL * NW
        assert pool % R == 0
        NCH = pool // R
        DYNBASE = S * SPL * NW * TILEB
    else:
        NTs = NT
    nloop, rem = divmod(NTs - R, R)
    xmask = 0
    while dyn and 2 + 2 * xmask + 1 <= nloop - 1 and xmask < 7:
        xmask = 2 * xmask + 1
    if dyn and init:
        assert nloop >= 3
    pol = (" " + policy) if policy else ""
    ldsneed = NW * 1536 + NW * 8 + 256
    ldsz = max(lds, ldsneed)

    sH, sJ, sW = 40, 41, 42
    sNext, sCnt, sC, sM, sT0, sT1 = 43, 44, 45, 46, 47, 48
    sStamp = 50
    sStride, sTk, sTo = 54, 55, 56
    sDo, sR, sX, sZ = 64, 65, 66, 67
    sXc, sRot = 68, 69
    SK_, SV_, SQ_, SO_, SW_, SD_ = 16, 20, 24, 28, 32, 36
    vOff, vOff2, vQoff, vLane = 1, 2, 3, 4
    vM, vMC, vL, vT, vF = 5, 6, 7, 8, 9
    vMask = 10
    vS = 14
    vQ = 20
    vAcc = 32
    vA = 44
    vD = 44 + 4 * G
    vD = (vD + 3) // 4 * 4
    def vK(r, g, c): return vD + r * 2 * 12 * G + (g * 3 + c) * 4
    def vV(r, g, c): return vD + r * 2 * 12 * G + 12 * G + (g * 3 + c) * 4
    vEnd = vD + R * 2 * 12 * G
    NM = max(NW, SPL)
    vEndMerge = 44 + NM * 8 + NM * 2 + NM + 8 + 8
    nvgpr = max(vEnd, vEndMerge)
    assert nvgpr <= 512

    a = Asm()
    def stamp(i):
        if ms:
            a("s_memrealtime s[%d:%d]" % (72 + 2 * i, 73 + 2 * i))
    a.raw(HEADER.rstrip())
    if two_kernel:
        a.raw("; @launch kernel=%s grid=(%d,1,1) block=(%d,1,1) lds=%d" % (NAME, WGS, NW * 64, ldsz))
        a.raw("; @launch kernel=combine_kernel grid=(%d,1,1) block=(64,1,1) lds=0" % H)
    else:
        a.raw("; @launch grid=(%d,1,1) block=(%d,1,1) lds=%d" % (WGS, NW * 64, ldsz))
    a.raw('.amdgcn_target "amdgcn-amd-amdhsa--gfx950"')
    a.raw(".text")
    a.raw(".globl %s" % NAME)
    a.raw(".p2align 8")
    a.raw(".type %s,@function" % NAME)
    a.label(NAME)
    a("s_cmp_ge_u32 s2, %d" % WGS)
    a("s_cbranch_scc1 L_end")
    a("s_load_dwordx8 s[4:11], s[0:1], 0")
    a("s_load_dwordx4 s[12:15], s[0:1], 32")
    if stamps:
        a("s_memrealtime s[%d:%d]" % (sStamp, sStamp + 1))
    a("v_lshrrev_b32 v%d, 6, v0" % vT)
    a("v_and_b32 v%d, 63, v0" % vLane)
    a("v_readfirstlane_b32 s%d, v%d" % (sW, vT))
    a("v_lshrrev_b32 v%d, 3, v%d" % (vF, vLane))
    a("v_and_b32 v%d, 7, v%d" % (vM, vLane))
    a("v_mul_u32_u24 v%d, %d, v%d" % (vF, ROWB, vF))
    a("v_lshlrev_b32 v%d, 4, v%d" % (vQoff, vM))
    a("v_add_u32 v%d, v%d, v%d" % (vOff, vQoff, vF))
    if G == 4:
        a("v_add_u32 v%d, %d, v%d" % (vOff2, 2 * 8 * ROWB, vOff))
    lg = int(math.log2(SPL))
    if hmap == "hi":
        a("s_lshr_b32 s%d, s2, %d" % (sH, lg))
        a("s_and_b32 s%d, s2, %d" % (sJ, SPL - 1))
    else:
        a("s_and_b32 s%d, s2, %d" % (sH, H - 1))
        a("s_lshr_b32 s%d, s2, 5" % sJ)
    if pattern == "A":
        a("s_mul_i32 s%d, s%d, %d" % (sT0, sJ, NW))
        a("s_add_u32 s%d, s%d, s%d" % (sT0, sT0, sW))
        a("s_mul_i32 s%d, s%d, %d" % (sNext, sT0, NTs * TILEB))
        stride = TILEB
    elif pattern == "B":
        a("s_mul_i32 s%d, s%d, %d" % (sT0, sJ, NW * (NT if dpat else NTs)))
        a("s_add_u32 s%d, s%d, s%d" % (sT0, sT0, sW))
        a("s_mul_i32 s%d, s%d, %d" % (sNext, sT0, TILEB))
        stride = TILEB * NW
        if skew & 1:
            nit = NTs // R
            a("s_mul_i32 s%d, s2, %d" % (sT0, skewk))
            a("s_mul_hi_u32 s%d, s%d, %d" % (sT1, sT0, (1 << 32) // (nit - 1) + 1))
            a("s_mul_i32 s%d, s%d, %d" % (sT1, sT1, nit - 1))
            a("s_sub_u32 s%d, s%d, s%d" % (sT0, sT0, sT1))
            a("s_sub_u32 s%d, %d, s%d" % (sXc, nit - 1, sT0))
            a("s_mul_i32 s%d, s%d, %d" % (sT0, sT0, R * stride))
            a("s_add_u32 s%d, s%d, s%d" % (sNext, sNext, sT0))
    elif pattern == "X":
        assert XB % R == 0 and NTs % XB == 0 and XB > R
        a("s_mul_i32 s%d, s%d, %d" % (sT0, sJ, NW * XB))
        a("s_add_u32 s%d, s%d, s%d" % (sT0, sT0, sW))
        a("s_mul_i32 s%d, s%d, %d" % (sNext, sT0, TILEB))
        a("s_mov_b32 s%d, %d" % (sXc, XB // R - 1))
        stride = TILEB * NW
    elif pattern == "D":
        a("s_mul_i32 s%d, s%d, %d" % (sT0, sJ, NW))
        a("s_add_u32 s%d, s%d, s%d" % (sT0, sT0, sW))
        if XB:
            a("s_mul_i32 s%d, s%d, %d" % (sT0, sW, SPL))
            a("s_add_u32 s%d, s%d, s%d" % (sT0, sT0, sJ))
        a("s_mul_i32 s%d, s%d, %d" % (sNext, sT0, TILEB * R))
        stride = TILEB
    else:
        a("s_mul_i32 s%d, s%d, %d" % (sT0, sJ, NW))
        a("s_add_u32 s%d, s%d, s%d" % (sT0, sT0, sW))
        a("s_mul_i32 s%d, s%d, %d" % (sNext, sT0, TILEB))
        stride = TILEB * NW * SPL
    a("s_mov_b32 s%d, %d" % (sStride, stride))
    if dyn and (skew & 2):
        a("s_mul_i32 s%d, s%d, %d" % (sRot, sH, NCH // H))
    if cws:
        a("s_mul_i32 s%d, s%d, %d" % (sTo, sH, cws))
        a("s_add_u32 s%d, s%d, %d" % (sTo, sTo, 1 << 20))
    else:
        a("s_lshl_b32 s%d, s%d, 3" % (sTo, sH))
        a("s_add_u32 s%d, s%d, 4" % (sTo, sTo))
    if lat:
        a("s_mov_b32 s60, 0")
        a("s_mov_b32 s61, 0")
    a("s_mul_i32 s%d, s%d, %d" % (sT0, sH, HEADB))
    a("s_mul_i32 s%d, s%d, %d" % (sT1, sH, ROWB))
    a("s_mov_b32 s%d, %d" % (SK_ + 2, HEADB))
    a("s_mov_b32 s%d, 0x20000" % (SK_ + 3))
    a("s_mov_b32 s%d, %d" % (SV_ + 2, HEADB))
    a("s_mov_b32 s%d, 0x20000" % (SV_ + 3))
    a("s_mov_b32 s%d, %d" % (SQ_ + 2, ROWB))
    a("s_mov_b32 s%d, 0x20000" % (SQ_ + 3))
    a("s_waitcnt lgkmcnt(0)")
    stamp(0)
    a("s_add_u32 s%d, s6, s%d" % (SK_, sT0))
    a("s_addc_u32 s%d, s7, 0" % (SK_ + 1))
    a("s_add_u32 s%d, s8, s%d" % (SV_, sT0))
    a("s_addc_u32 s%d, s9, 0" % (SV_ + 1))
    a("s_add_u32 s%d, s4, s%d" % (SQ_, sT1))
    a("s_addc_u32 s%d, s5, 0" % (SQ_ + 1))

    def loads(which, r):
        srd = SK_ if which == "K" else SV_
        f = vK if which == "K" else vV
        for g in range(G):
            vo = vOff2 if g >= 2 else vOff
            for c in range(3):
                off = (g % 2) * 8 * ROWB + c * 128
                reg = f(r, g, c)
                a("buffer_load_dwordx4 v[%d:%d], v%d, s[%d:%d], s%d offen offset:%d%s"
                  % (reg, reg + 3, vo, srd, srd + 3, sNext, off, pol))

    for c in range(3):
        a("buffer_load_dwordx4 v[%d:%d], v%d, s[%d:%d], 0 offen offset:%d"
          % (vQ + 4 * c, vQ + 4 * c + 3, vQoff, SQ_, SQ_ + 3, c * 128))
    for r in range(R):
        loads("K", r)
        loads("V", r)
        a("s_add_u32 s%d, s%d, s%d" % (sNext, sNext, sStride))
    if pattern == "D":
        a("s_add_u32 s%d, s%d, %d" % (sNext, sNext, (SPL * NW - 1) * R * TILEB))
    stamp(1)
    a("s_mov_b32 s%d, 0x%08x" % (sC, CSCALE))
    a("s_mov_b32 s%d, s10" % SO_)
    a("s_mov_b32 s%d, s11" % (SO_ + 1))
    a("s_mov_b32 s%d, %d" % (SO_ + 2, H * ROWB))
    a("s_mov_b32 s%d, 0x20000" % (SO_ + 3))
    a("s_mov_b32 s%d, s14" % SW_)
    a("s_mov_b32 s%d, s15" % (SW_ + 1))
    a("s_mov_b32 s%d, %d" % (SW_ + 2, WGS * 1024 + (WGS * 64 if stamps else 0)))
    a("s_mov_b32 s%d, 0x20000" % (SW_ + 3))
    a("s_mov_b32 s%d, s12" % SD_)
    a("s_mov_b32 s%d, s13" % (SD_ + 1))
    a("s_mov_b32 s%d, 256" % (SD_ + 2))
    a("s_mov_b32 s%d, 0x20000" % (SD_ + 3))
    if dyn and init:
        a("s_lshl_b32 s%d, s%d, 3" % (sDo, sH))
        a("s_mov_b32 s%d, 0" % sR)
        a("s_add_u32 s%d, s2, s%d" % (sX, sW))
        a("s_and_b32 s%d, s%d, %d" % (sX, sX, xmask))
        a("s_add_u32 s%d, s%d, 2" % (sX, sX))
        a("s_cmp_lg_u32 s%d, 0" % sW)
        a("s_cbranch_scc1 L_noinit")
        a("s_mov_b32 s%d, 1" % sZ)
        a("s_atomic_add s%d, s[12:13], s%d glc" % (sZ, sDo))
        a("s_waitcnt lgkmcnt(0)")
        a("s_cmp_lg_u32 s%d, 0" % sZ)
        a("s_cbranch_scc1 L_noinit")
        a("s_add_u32 s%d, s%d, 128" % (sT0, sTo))
        a("s_mov_b32 s%d, 0" % sTk)
        a("s_atomic_swap s%d, s[14:15], s%d glc" % (sZ, sTo))
        a("s_atomic_swap s%d, s[14:15], s%d glc" % (sTk, sT0))
        a("s_waitcnt lgkmcnt(0)")
        a("s_mov_b32 s%d, 0x10000" % sZ)
        a("s_atomic_add s%d, s[12:13], s%d glc" % (sZ, sDo))
        a("s_waitcnt lgkmcnt(0)")
        a.label("L_noinit")
    a("v_and_b32 v%d, 1, v%d" % (vT, vM))
    a("v_lshlrev_b32 v%d, 4, v%d" % (vT, vT))
    a("v_mov_b32 v%d, 0xffff" % vF)
    a("v_lshlrev_b32 v%d, v%d, v%d" % (vF, vT, vF))
    a("v_lshrrev_b32 v%d, 1, v%d" % (vT, vM))
    for r in range(4):
        a("v_cmp_eq_u32 vcc, %d, v%d" % (r, vT))
        a.nop(2)
        a("v_cndmask_b32 v%d, 0, v%d, vcc" % (vMask + r, vF))
    a("v_mov_b32 v%d, 0xff800000" % vM)
    a("v_mov_b32 v%d, 0" % vMC)
    a("v_mov_b32 v%d, 0" % vL)
    for i in range(12):
        a("v_mov_b32 v%d, 0" % (vAcc + i))

    stamp(2)
    if ms:
        a("s_waitcnt vmcnt(%d)" % ((2 * R - 1) * n + n))
        stamp(3)
        a("s_waitcnt vmcnt(%d)" % ((2 * R - 1) * n))
        stamp(4)
        a("s_waitcnt vmcnt(0)")
        stamp(5)
    rare = []
    def tile(r, with_loads, wk, wv):
        tag = len(rare)
        a("s_waitcnt vmcnt(%d)" % wk)
        for c in range(3):
            for dw in range(4):
                for g in range(G):
                    src2 = "0" if (c == 0 and dw == 0) else "v%d" % (vS + g)
                    a("v_dot2_f32_bf16 v%d, v%d, v%d, %s" % (vS + g, vK(r, g, c) + dw, vQ + 4 * c + dw, src2))
        if with_loads:
            loads("K", r)
        else:
            a.nop(3)
        for mod in ("quad_perm:[1,0,3,2]", "quad_perm:[2,3,0,1]", "row_half_mirror"):
            for g in range(G):
                a("v_add_f32_dpp v%d, v%d, v%d %s row_mask:0xf bank_mask:0xf" % (vS + g, vS + g, vS + g, mod))
            if mod != "row_half_mirror":
                a.nop(max(0, 2 - (G - 1)))
        if G == 1:
            tm = vS
        elif G == 2:
            a("v_max_f32 v%d, v%d, v%d" % (vT, vS, vS + 1)); tm = vT
        else:
            a("v_max3_f32 v%d, v%d, v%d, v%d" % (vT, vS, vS + 1, vS + 2))
            a("v_max_f32 v%d, v%d, v%d" % (vT, vT, vS + 3)); tm = vT
        a("v_cmp_gt_f32 vcc, v%d, v%d" % (tm, vM))
        a("s_cbranch_vccnz L_rare%d" % tag)
        a.label("L_back%d" % tag)
        rare.append(tm)
        for g in range(G):
            a("v_fma_f32 v%d, v%d, s%d, -v%d" % (vS + g, vS + g, sC, vMC))
        for g in range(G):
            a("v_exp_f32 v%d, v%d" % (vS + g, vS + g))
        if G == 1:
            a.nop(1)
        for g in range(G):
            a("v_add_f32 v%d, v%d, v%d" % (vL, vL, vS + g))
        for g in range(G):
            a("v_cvt_pk_bf16_f32 v%d, v%d, v%d" % (vS + g, vS + g, vS + g))
        for g in range(G):
            for q in range(4):
                a("v_and_b32 v%d, v%d, v%d" % (vA + 4 * g + q, vS + g, vMask + q))
        a("s_waitcnt vmcnt(%d)" % wv)
        a.nop(1)
        for g in range(G):
            for c in range(3):
                a("v_mfma_f32_16x16x32_bf16 v[%d:%d], v[%d:%d], v[%d:%d], v[%d:%d]"
                  % (vAcc + 4 * c, vAcc + 4 * c + 3, vA + 4 * g, vA + 4 * g + 3,
                     vV(r, g, c), vV(r, g, c) + 3, vAcc + 4 * c, vAcc + 4 * c + 3))
        if with_loads:
            loads("V", r)
            a("s_add_u32 s%d, s%d, s%d" % (sNext, sNext, sStride))

    full = (2 * R - 1) * n
    if dyn:
        a("s_mov_b32 s%d, %d" % (sCnt, nloop))
        a.raw(".p2align 6")
        a.label("L_loop")
        for r in range(R):
            if r == R - req:
                a("s_cmp_gt_u32 s%d, 1" % sCnt)
                a("s_cbranch_scc1 L_noreq")
                if init:
                    a("s_waitcnt lgkmcnt(0)")
                    a("s_cmp_ge_u32 s%d, 0x10000" % sR)
                    a("s_cbranch_scc0 L_chk")
                    a.label("L_req")
                a("s_mov_b32 s%d, 1" % sTk)
                a("s_atomic_add s%d, s[%s], s%d glc" % (sTk, "14:15" if cws else "12:13", sTo))
                a.label("L_noreq")
            tile(r, True, full, full)
        a("s_cmp_gt_u32 s%d, 1" % sCnt)
        a("s_cbranch_scc0 L_dyn")
        a("s_sub_u32 s%d, s%d, 1" % (sCnt, sCnt))
        if pattern == "D":
            a("s_add_u32 s%d, s%d, %d" % (sNext, sNext, (SPL * NW - 1) * R * TILEB))
        if pattern == "B" and (skew & 1):
            a("s_sub_u32 s%d, s%d, 1" % (sXc, sXc))
            a("s_cmp_lg_u32 s%d, 0" % sXc)
            a("s_cbranch_scc1 L_nojump")
            a("s_sub_u32 s%d, s%d, %d" % (sNext, sNext, NTs * stride))
            a.label("L_nojump")
        if pattern == "X":
            a("s_sub_u32 s%d, s%d, 1" % (sXc, sXc))
            a("s_cmp_lg_u32 s%d, 0" % sXc)
            a("s_cbranch_scc1 L_nojump")
            a("s_mov_b32 s%d, %d" % (sXc, XB // R))
            a("s_add_u32 s%d, s%d, %d" % (sNext, sNext, (SPL - 1) * XB * NW * TILEB))
            a.label("L_nojump")
        if init:
            a("s_cmp_lg_u32 s%d, s%d" % (sCnt, sX))
            a("s_cbranch_scc1 L_loop")
            a("s_atomic_add s%d, s[12:13], s%d glc" % (sR, sDo))
        a("s_branch L_loop")
        if init:
            a.label("L_chk")
            a("s_sleep 2")
            a("s_mov_b32 s%d, 0" % sR)
            a("s_atomic_add s%d, s[12:13], s%d glc" % (sR, sDo))
            a("s_waitcnt lgkmcnt(0)")
            a("s_cmp_ge_u32 s%d, 0x10000" % sR)
            a("s_cbranch_scc0 L_chk")
            a("s_branch L_req")
        a.label("L_dyn")
        if lat:
            a("s_memtime s[58:59]")
            a("s_waitcnt lgkmcnt(0)")
            if req == 0:
                a("s_mov_b32 s%d, 1" % sTk)
                a("s_atomic_add s%d, s[%s], s%d glc" % (sTk, "14:15" if cws else "12:13", sTo))
                a("s_waitcnt lgkmcnt(0)")
            a("s_memtime s[62:63]")
            a("s_waitcnt lgkmcnt(0)")
            a("s_sub_u32 s58, s62, s58")
            a("s_add_u32 s60, s60, s58")
            a("s_add_u32 s61, s61, 1")
        a("s_waitcnt lgkmcnt(0)")
        a("s_cmp_ge_u32 s%d, %d" % (sTk, NCH))
        a("s_cbranch_scc1 L_drain")
        if skew & 2:
            a("s_add_u32 s%d, s%d, s%d" % (sTk, sTk, sRot))
            a("s_sub_u32 s%d, s%d, %d" % (sT0, sTk, NCH))
            a("s_cmp_ge_u32 s%d, %d" % (sTk, NCH))
            a("s_cselect_b32 s%d, s%d, s%d" % (sTk, sT0, sTk))
        if dpat:
            assert pattern == "B"
            a("s_and_b32 s%d, s%d, %d" % (sT0, sTk, SPL - 1))
            a("s_lshr_b32 s%d, s%d, %d" % (sTk, sTk, lg))
            a("s_mul_i32 s%d, s%d, %d" % (sT0, sT0, NW * NT * TILEB))
            a("s_mul_i32 s%d, s%d, %d" % (sNext, sTk, R * TILEB))
            a("s_add_u32 s%d, s%d, s%d" % (sNext, sNext, sT0))
            a("s_add_u32 s%d, s%d, %d" % (sNext, sNext, S * NW * TILEB))
        else:
            a("s_mul_i32 s%d, s%d, %d" % (sNext, sTk, R * TILEB))
            a("s_add_u32 s%d, s%d, %d" % (sNext, sNext, DYNBASE))
        a("s_mov_b32 s%d, %d" % (sStride, TILEB))
        a("s_branch L_loop")
        a.label("L_drain")
        stamp(6)
    elif nloop > 0:
        a("s_mov_b32 s%d, %d" % (sCnt, nloop))
        a.raw(".p2align 6")
        a.label("L_loop")
        for r in range(R):
            tile(r, True, full, full)
        a("s_sub_u32 s%d, s%d, 1" % (sCnt, sCnt))
        a("s_cmp_lg_u32 s%d, 0" % sCnt)
        a("s_cbranch_scc1 L_loop")
    for r in range(rem):
        tile(r, True, full, full)
    for i in range(R):
        r = (rem + i) % R
        left = R - 1 - i
        tile(r, False, (2 * left + 1) * n, 2 * left * n)

    stamp(7)
    a("v_add_f32_dpp v%d, v%d, v%d row_mirror row_mask:0xf bank_mask:0xf" % (vL, vL, vL))
    a("v_lshrrev_b32 v%d, 5, v%d" % (vT, vLane))
    a("v_mul_u32_u24 v%d, 768, v%d" % (vT, vT))
    a("v_add_f32_dpp v%d, v%d, v%d row_bcast:15 row_mask:0xa bank_mask:0xf" % (vL, vL, vL))
    a("v_and_b32 v%d, 7, v%d" % (vF, vLane))
    a("v_lshl_add_u32 v%d, v%d, 5, v%d" % (vT, vF, vT))
    a("v_add_f32_dpp v%d, v%d, v%d row_bcast:31 row_mask:0xc bank_mask:0xf" % (vL, vL, vL))
    a("v_and_b32 v%d, 16, v%d" % (vF, vLane))
    a("v_add_u32 v%d, v%d, v%d" % (vT, vT, vF))
    a("s_mul_i32 s%d, s%d, 1536" % (sT0, sW))
    a("v_add_u32 v%d, s%d, v%d" % (vT, sT0, vT))
    a("s_lshl_b32 s%d, s%d, 3" % (sT1, sW))
    a("s_add_u32 s%d, s%d, %d" % (sT1, sT1, NW * 1536))
    a("v_mov_b32 v%d, s%d" % (vF, sT1))
    a("v_mov_b32 v%d, v%d" % (vS, vM))
    a("v_mov_b32 v%d, v%d" % (vS + 1, vL))
    a.nop(8)
    a("s_mov_b32 exec_lo, 0x00ff00ff")
    a("s_mov_b32 exec_hi, 0xff00ff00")
    for c in range(3):
        a("ds_write_b128 v%d, v[%d:%d] offset:%d" % (vT, vAcc + 4 * c, vAcc + 4 * c + 3, 256 * c))
    a("s_mov_b32 exec_lo, 0")
    a("s_mov_b32 exec_hi, 0x80000000")
    a("ds_write_b64 v%d, v[%d:%d]" % (vF, vS, vS + 1))
    a("s_mov_b64 exec, -1")
    a("s_waitcnt lgkmcnt(0)")
    a("s_barrier")
    a("s_cmp_lg_u32 s%d, 0" % sW)
    a("s_cbranch_scc1 L_end")
    mO = 44
    mML = mO + NM * 8
    mT = mML + NM * 2
    mR = (mT + NM + 3) // 4 * 4
    mM, mL = mR + 4, mR + 5
    a("v_lshlrev_b32 v%d, 4, v%d" % (vT, vLane))
    a("v_mov_b32 v%d, %d" % (vF, NW * 1536))
    if NW == 1:
        a("ds_read_b64 v[%d:%d], v%d" % (mML, mML + 1, vF))
    for i in range(NW // 2):
        a("ds_read_b128 v[%d:%d], v%d offset:%d" % (mML + 4 * i, mML + 4 * i + 3, vF, 16 * i))
    for i in range(NW * 2):
        a("ds_read_b128 v[%d:%d], v%d offset:%d" % (mO + 4 * i, mO + 4 * i + 3, vT, 768 * i))
    a("s_waitcnt lgkmcnt(0)")
    merge_math(a, NW, lambda i: mML + 2 * i, lambda i: mML + 2 * i + 1,
               lambda i, h: mO + 8 * i + 4 * h, 2, mM, mL, mR, mT, sC)
    a("v_cmp_eq_u32 vcc, 48, v%d" % vLane)
    a("s_mul_i32 s%d, s%d, %d" % (sT0, sH, SPL))
    a("s_add_u32 s%d, s%d, s%d" % (sT1, sT0, sJ))
    a("s_lshl_b32 s%d, s%d, 10" % (sT1, sT1))
    a("v_cndmask_b32 v%d, v%d, v%d, vcc" % (mR, mR, mM))
    a("v_cndmask_b32 v%d, v%d, v%d, vcc" % (mR + 1, mR + 1, mL))
    a("s_mov_b32 exec_lo, -1")
    a("s_mov_b32 exec_hi, 0x1ffff")
    a("buffer_store_dwordx4 v[%d:%d], v%d, s[%d:%d], s%d offen%s"
      % (mR, mR + 3, vT, SW_, SW_ + 3, sT1, "" if two_kernel else " sc1"))
    if stamps:
        a("s_memrealtime s[%d:%d]" % (sStamp + 2, sStamp + 3))
        a("s_getreg_b32 s%d, hwreg(HW_REG_XCC_ID)" % sM)
        a("s_getreg_b32 s%d, hwreg(HW_REG_HW_ID)" % sCnt)
        a("s_waitcnt lgkmcnt(0)")
        a("v_mov_b32 v%d, s%d" % (vQ, sStamp))
        a("v_mov_b32 v%d, s%d" % (vQ + 1, sStamp + 2))
        a("v_mov_b32 v%d, s%d" % (vQ + 2, sM))
        a("v_mov_b32 v%d, s%d" % (vQ + 3, sCnt))
        if lat:
            a("s_lshl_b32 s60, s60, 8")
            a("s_or_b32 s60, s60, s61")
            a("v_mov_b32 v%d, s60" % (vQ + 3))
        a("s_lshl_b32 s%d, s2, 4" % sM)
        a("s_add_u32 s%d, s%d, %d" % (sM, sM, WGS * 1024))
        a("s_mov_b64 exec, 1")
        a("buffer_store_dwordx4 v[%d:%d], off, s[%d:%d], s%d" % (vQ, vQ + 3, SW_, SW_ + 3, sM))
        if ms:
            for i in range(8):
                a("v_mov_b32 v%d, s%d" % (vQ + 4 + i, 72 + 2 * i))
            a("s_lshl_b32 s%d, s2, 5" % sM)
            a("s_add_u32 s%d, s%d, %d" % (sM, sM, WGS * 1024 + WGS * 16))
            a("buffer_store_dwordx4 v[%d:%d], off, s[%d:%d], s%d" % (vQ + 4, vQ + 7, SW_, SW_ + 3, sM))
            a("buffer_store_dwordx4 v[%d:%d], off, s[%d:%d], s%d offset:16" % (vQ + 8, vQ + 11, SW_, SW_ + 3, sM))
    if not two_kernel:
        if dyn and init:
            a("s_mov_b64 exec, -1")
            a("s_add_u32 s%d, s%d, 128" % (sTo, sTo))
            a("s_mov_b32 s%d, 1" % sT1)
            a("s_waitcnt vmcnt(0)")
            a("s_atomic_add s%d, s[14:15], s%d glc" % (sT1, sTo))
            a("s_waitcnt lgkmcnt(0)")
        else:
            a("s_mov_b64 exec, 1")
            a("v_mov_b32 v%d, 1" % vF)
            a("s_lshl_b32 s%d, s%d, 3" % (sT1, sH))
            a("s_waitcnt vmcnt(0)")
            a("buffer_atomic_add v%d, off, s[%d:%d], s%d sc0" % (vF, SD_, SD_ + 3, sT1))
            a("s_waitcnt vmcnt(0)")
            a("v_readfirstlane_b32 s%d, v%d" % (sT1, vF))
            a("s_mov_b64 exec, -1")
            a.nop(4)
        a("s_cmp_lg_u32 s%d, %d" % (sT1, SPL - 1))
        a("s_cbranch_scc1 L_end")
        final(a, SPL, sT0, sT1, sH, sC, SW_, SO_, vT, vF, vLane, mO, mML, mT, mR, mM, mL, " sc1")
    a.label("L_end")
    a("s_endpgm")

    for tag, tm in enumerate(rare):
        a.label("L_rare%d" % tag)
        a("v_mov_b32 v%d, v%d" % (vF, tm))
        a.nop(2)
        a("v_max_f32_dpp v%d, v%d, v%d row_mirror row_mask:0xf bank_mask:0xf" % (vF, vF, vF))
        a.nop(2)
        a("v_max_f32_dpp v%d, v%d, v%d row_bcast:15 row_mask:0xa bank_mask:0xf" % (vF, vF, vF))
        a.nop(2)
        a("v_max_f32_dpp v%d, v%d, v%d row_bcast:31 row_mask:0xc bank_mask:0xf" % (vF, vF, vF))
        a.nop(2)
        a("v_readlane_b32 s%d, v%d, 63" % (sM, vF))
        a.nop(2)
        a("v_subrev_f32 v%d, s%d, v%d" % (vF, sM, vM))
        a("v_mov_b32 v%d, s%d" % (vM, sM))
        a("v_mul_f32 v%d, s%d, v%d" % (vF, sC, vF))
        a("v_mul_f32 v%d, s%d, v%d" % (vMC, sC, vM))
        a("v_exp_f32 v%d, v%d" % (vF, vF))
        a.nop(1)
        for i in range(12):
            a("v_mul_f32 v%d, v%d, v%d" % (vAcc + i, vF, vAcc + i))
        a("v_mul_f32 v%d, v%d, v%d" % (vL, vF, vL))
        a("s_branch L_back%d" % tag)

    if two_kernel:
        a.raw(".globl combine_kernel")
        a.raw(".p2align 8")
        a.raw(".type combine_kernel,@function")
        a.label("combine_kernel")
        a("s_cmp_ge_u32 s2, %d" % H)
        a("s_cbranch_scc1 L_end2")
        a("s_load_dwordx2 s[%d:%d], s[0:1], 24" % (SO_, SO_ + 1))
        a("s_load_dwordx2 s[%d:%d], s[0:1], 40" % (SW_, SW_ + 1))
        a("s_mov_b32 s%d, %d" % (SO_ + 2, H * ROWB))
        a("s_mov_b32 s%d, 0x20000" % (SO_ + 3))
        a("s_mov_b32 s%d, %d" % (SW_ + 2, WGS * 1024))
        a("s_mov_b32 s%d, 0x20000" % (SW_ + 3))
        a("s_mov_b32 s%d, 0x%08x" % (sC, CSCALE))
        a("s_mov_b32 s%d, s2" % sH)
        a("s_mul_i32 s%d, s%d, %d" % (sT0, sH, SPL))
        a("v_mov_b32 v%d, v0" % vLane)
        a("v_lshlrev_b32 v%d, 4, v0" % vT)
        a("s_waitcnt lgkmcnt(0)")
        final(a, SPL, sT0, sT1, sH, sC, SW_, SO_, vT, vF, vLane, mO, mML, mT, mR, mM, mL, "")
        a.label("L_end2")
        a("s_endpgm")

    a.raw('.section .rodata,"a"')
    def kd(name, nv):
        a.raw(".p2align 6")
        a.raw(".amdhsa_kernel %s" % name)
        a.raw("  .amdhsa_next_free_vgpr %d" % nv)
        a.raw("  .amdhsa_next_free_sgpr 96")
        a.raw("  .amdhsa_accum_offset %d" % min(256, (nv + 3) // 4 * 4))
        a.raw("  .amdhsa_group_segment_fixed_size 0")
        a.raw("  .amdhsa_kernarg_size 48")
        a.raw("  .amdhsa_user_sgpr_count 2")
        a.raw("  .amdhsa_user_sgpr_kernarg_segment_ptr 1")
        a.raw("  .amdhsa_system_sgpr_workgroup_id_x 1")
        a.raw(".end_amdhsa_kernel")
    assert nvgpr <= 256
    kd(NAME, nvgpr)
    if two_kernel:
        kd("combine_kernel", vEndMerge)
    return a.text()


def final(a, SPL, sT0, sT1, sH, sC, SW_, SO_, vT, vF, vLane, mO, mML, mT, mR, mM, mL, pol):
    a("s_lshl_b32 s%d, s%d, 10" % (sT0, sT0))
    for i in range(SPL):
        if i and i % 4 == 0:
            a("s_add_u32 s%d, s%d, 4096" % (sT0, sT0))
        a("buffer_load_dwordx2 v[%d:%d], off, s[%d:%d], s%d offset:%d%s"
          % (mML + 2 * i, mML + 2 * i + 1, SW_, SW_ + 3, sT0, (i % 4) * 1024 + 768, pol))
        a("buffer_load_dwordx4 v[%d:%d], v%d, s[%d:%d], s%d offen offset:%d%s"
          % (mO + 4 * i, mO + 4 * i + 3, vT, SW_, SW_ + 3, sT0, (i % 4) * 1024, pol))
    a("s_waitcnt vmcnt(0)")
    merge_math(a, SPL, lambda i: mML + 2 * i, lambda i: mML + 2 * i + 1,
               lambda i, h: mO + 4 * i, 1, mM, mL, mR, mT, sC)
    a("v_rcp_f32 v%d, v%d" % (mL, mL))
    a("v_lshlrev_b32 v%d, 3, v%d" % (vT, vLane))
    a("s_mul_i32 s%d, s%d, %d" % (sT1, sH, ROWB))
    for r in range(4):
        a("v_mul_f32 v%d, v%d, v%d" % (mR + r, mL, mR + r))
    a("v_cvt_pk_bf16_f32 v%d, v%d, v%d" % (mR, mR, mR + 1))
    a("v_cvt_pk_bf16_f32 v%d, v%d, v%d" % (mR + 1, mR + 2, mR + 3))
    a("s_mov_b32 exec_lo, -1")
    a("s_mov_b32 exec_hi, 0xffff")
    a("buffer_store_dwordx2 v[%d:%d], v%d, s[%d:%d], s%d offen" % (mR, mR + 1, vT, SO_, SO_ + 3, sT1))


if __name__ == "__main__":
    kw = {}
    out = sys.argv[1]
    for x in sys.argv[2:]:
        k, v = x.split("=")
        if v in ("True", "False"):
            v = v == "True"
        else:
            try:
                v = int(v)
            except ValueError:
                v = v.replace("+", " ")
        kw[k] = v
    open(out, "w").write(gen(**kw))
```

```python
import sys, math, struct
from gen import Asm, HEADER, NAME, H, SK, D, ROWB, HEADB, CSCALE

SPL = 8
WGS = 256
CB = 1 << 20


def gen(G=1, R=8, CH=4, S=416, policy="nt", lds=90000, skew=3, skewk=7, stamps=False, ms=False,
        fast=True, qlast=False, lin=False, hs=-1, js=0, voff=0, nst=0, Dk=0, BIG=1, tail=0, BS=0, ba=5, bb=3, bc=1, bd=0, hk=0, l2test=0, SM=1, lead=1, early=True):
    n = 3 * G
    TILEB = 8 * G * ROWB
    tiles_head = SK // (8 * G)
    NT = tiles_head // SPL
    assert R % CH == 0 and S % CH == 0 and (2 * R - 1) * n <= 63
    nseg = R // CH
    assert lead == 1 or (BIG >= lead and SM >= lead)
    pool = tiles_head - S * SPL
    assert pool % CH == 0
    NCH = pool // CH
    if BIG > 1:
        assert (NCH - tail) % BIG == 0 and tail % SM == 0 and not nst
        N1 = (NCH - tail) // BIG
        NTK = N1 + tail // SM
    else:
        N1, NTK = 0, NCH
    DYNBASE = S * SPL * TILEB
    nstat = (S - R) // CH
    niter = nstat // nseg
    pol = (" " + policy) if policy else ""
    full = (2 * R - 1) * n

    sH, sJ = 40, 41
    sNext, sCnt, sC, sM, sT0, sT1 = 43, 44, 45, 46, 47, 48
    sStamp = 50
    sTk, sTo = 55, 56
    sDo, sR, sX, sZ, sXc, sRot, sIt, sEv, sDone, sB = 64, 65, 66, 67, 68, 69, 70, 71, 57, 58
    sTc, sTpb, sStep, sStepJ, sEnd, sWr = 88, 89, 90, 91, 92, 93
    vOffP = 2
    vRec, vOa, vOb = 4, 18, 19
    sRo, sOo = 24, 36
    if nst:
        assert G == 1 and hs >= 0
        w = 8 // nst
        tpb = Dk // w
        assert Dk % w == 0 and S % tpb == 0
    SK_, SV_, SQ_, SO_, SW_ = 16, 20, 60, 96, 32
    vOff, vQoff = 1, 3
    vM, vMC, vL, vT, vF = 5, 6, 7, 8, 9
    vMask, vS, vQ, vAcc, vA = 10, 14, 20, 32, 44
    vD = 44 + 4 * G
    vD = (vD + 3) // 4 * 4
    def vK(r, g, c): return vD + r * 24 * G + (g * 3 + c) * 4
    def vV(r, g, c): return vD + r * 24 * G + 12 * G + (g * 3 + c) * 4
    vSent = max(vD + R * 24 * G, 96)
    nvgpr = vSent + 4
    assert nvgpr <= 256

    a = Asm()
    def stamp(i):
        if ms:
            a("s_memrealtime s[%d:%d]" % (72 + 2 * i, 73 + 2 * i))
    a.raw(HEADER.rstrip())
    a.raw("; @launch grid=(%d,1,1) block=(64,1,1) lds=%d" % (WGS, lds))
    a.raw('.amdgcn_target "amdgcn-amd-amdhsa--gfx950"')
    a.raw(".text")
    a.raw(".globl %s" % NAME)
    a.raw(".p2align 8")
    a.raw(".type %s,@function" % NAME)
    a.label(NAME)
    a("s_cmp_ge_u32 s2, %d" % WGS)
    a("s_cbranch_scc1 L_end")
    a("s_load_dwordx8 s[4:11], s[0:1], 0")
    a("s_load_dwordx4 s[12:15], s[0:1], 32")
    if stamps:
        a("s_memrealtime s[%d:%d]" % (sStamp, sStamp + 1))
    a("v_lshrrev_b32 v%d, 3, v0" % vF)
    a("v_and_b32 v%d, 7, v0" % vM)
    a("v_mul_u32_u24 v%d, %d, v%d" % (vF, ROWB, vF))
    a("v_lshlrev_b32 v%d, 4, v%d" % (vQoff, vM))
    a("v_add_u32 v%d, v%d, v%d" % (vOff, vQoff, vF))
    if lin:
        a("v_lshlrev_b32 v%d, 4, v0" % vOff)
    a("s_lshr_b32 s%d, s2, 3" % sH)
    a("s_and_b32 s%d, s2, 7" % sJ)
    if hk:
        a("s_mul_i32 s%d, s%d, %d" % (sT0, sJ, hk))
        a("s_add_u32 s%d, s%d, s%d" % (sH, sH, sT0))
        a("s_and_b32 s%d, s%d, 31" % (sH, sH))
    a("s_mul_i32 s%d, s%d, %d" % (sNext, sJ, S * TILEB))
    if BS:
        NB = S // (BS * CH)
        assert NB * BS * CH == S and BS * CH >= R and (BS * CH - R) % CH == 0 and not nst
        BLKB = BS * CH * TILEB
        a("s_mul_i32 s%d, s%d, %d" % (sT0, sH, ba))
        a("s_mul_i32 s%d, s%d, %d" % (sT1, sJ, bb))
        a("s_add_u32 s%d, s%d, s%d" % (sT0, sT0, sT1))
        a("s_mul_hi_u32 s%d, s%d, %d" % (sT1, sT0, (1 << 32) // (NB - 1) + 1))
        a("s_mul_i32 s%d, s%d, %d" % (sT1, sT1, NB - 1))
        a("s_sub_u32 s%d, s%d, s%d" % (sT0, sT0, sT1))
        a("s_add_u32 s%d, s%d, 1" % (sT0, sT0))
        a("s_mul_i32 s%d, s%d, %d" % (sStep, sT0, BLKB))
        a("s_mul_i32 s%d, s%d, %d" % (sT0, sH, bc))
        a("s_mul_i32 s%d, s%d, %d" % (sT1, sJ, bd))
        a("s_add_u32 s%d, s%d, s%d" % (sT0, sT0, sT1))
        a("s_mul_hi_u32 s%d, s%d, %d" % (sT1, sT0, (1 << 32) // NB + 1))
        a("s_mul_i32 s%d, s%d, %d" % (sT1, sT1, NB))
        a("s_sub_u32 s%d, s%d, s%d" % (sT0, sT0, sT1))
        a("s_mul_i32 s%d, s%d, %d" % (sT0, sT0, BLKB))
        a("s_add_u32 s%d, s%d, %d" % (sEnd, sNext, S * TILEB))
        a("s_add_u32 s%d, s%d, s%d" % (sNext, sNext, sT0))
        a("s_sub_u32 s%d, s%d, %d" % (sStep, sStep, BLKB))
        a("s_mov_b32 s%d, %d" % (sXc, BS - nseg))
    elif nst:
        a("v_mov_b32 v%d, v%d" % (vOffP, vOff))
        a("v_lshrrev_b32 v%d, %d, v0" % (vT, 3 + int(math.log2(w))))
        a("v_mul_u32_u24 v%d, %d, v%d" % (vT, (Dk - w) * ROWB, vT))
        a("v_add_u32 v%d, v%d, v%d" % (vOff, vOff, vT))
        a("s_add_u32 s%d, s%d, %d" % (sEnd, sNext, S * TILEB))
        a("s_mul_i32 s%d, s%d, %d" % (sT0, sH, hs * CH))
        a("s_mul_i32 s%d, s%d, %d" % (sT1, sJ, js * CH))
        a("s_add_u32 s%d, s%d, s%d" % (sT0, sT0, sT1))
        a("s_mul_hi_u32 s%d, s%d, %d" % (sT1, sT0, (1 << 32) // S + 1))
        a("s_mul_i32 s%d, s%d, %d" % (sT1, sT1, S))
        a("s_sub_u32 s%d, s%d, s%d" % (sT0, sT0, sT1))
        a("s_mul_hi_u32 s%d, s%d, %d" % (sT1, sT0, (1 << 32) // tpb + 1))
        a("s_mul_i32 s%d, s%d, %d" % (sTc, sT1, tpb))
        a("s_sub_u32 s%d, s%d, s%d" % (sT0, sT0, sTc))
        a("s_sub_u32 s%d, %d, s%d" % (sTc, tpb, sT0))
        a("s_mul_i32 s%d, s%d, %d" % (sT1, sT1, tpb * TILEB))
        a("s_mul_i32 s%d, s%d, %d" % (sT0, sT0, w * ROWB))
        a("s_add_u32 s%d, s%d, s%d" % (sNext, sNext, sT1))
        a("s_add_u32 s%d, s%d, s%d" % (sNext, sNext, sT0))
        a("s_mov_b32 s%d, %d" % (sTpb, tpb))
        a("s_mov_b32 s%d, %d" % (sStep, w * ROWB))
        a("s_mov_b32 s%d, %d" % (sStepJ, w * ROWB + (nst - 1) * Dk * ROWB))
        a("s_mov_b32 s%d, %d" % (sWr, S * TILEB))
    elif skew & 1:
        m = nstat + 1
        if hs >= 0:
            a("s_mul_i32 s%d, s%d, %d" % (sT0, sH, hs))
            a("s_mul_i32 s%d, s%d, %d" % (sT1, sJ, js))
            a("s_add_u32 s%d, s%d, s%d" % (sT0, sT0, sT1))
        else:
            a("s_mul_i32 s%d, s2, %d" % (sT0, skewk * nseg))
        a("s_mul_hi_u32 s%d, s%d, %d" % (sT1, sT0, (1 << 32) // m + 1))
        a("s_mul_i32 s%d, s%d, %d" % (sT1, sT1, m))
        a("s_sub_u32 s%d, s%d, s%d" % (sT0, sT0, sT1))
        a("s_sub_u32 s%d, %d, s%d" % (sXc, nstat, sT0))
        a("s_mul_i32 s%d, s%d, %d" % (sT0, sT0, CH * TILEB))
        a("s_add_u32 s%d, s%d, s%d" % (sNext, sNext, sT0))
    a("s_mul_i32 s%d, s%d, %d" % (sT0, sH, HEADB))
    a("s_mul_i32 s%d, s%d, %d" % (sT1, sH, ROWB))
    for srd, sz in ((SK_, HEADB), (SV_, HEADB), (SQ_, ROWB)):
        a("s_mov_b32 s%d, %d" % (srd + 2, sz))
        a("s_mov_b32 s%d, 0x20000" % (srd + 3))
    a("s_lshl_b32 s%d, s%d, 3" % (sDo, sH))
    a("s_mov_b32 s%d, 1" % sZ)
    a("s_waitcnt lgkmcnt(0)")
    stamp(0)
    a("s_add_u32 s%d, s6, s%d" % (SK_, sT0))
    a("s_addc_u32 s%d, s7, 0" % (SK_ + 1))
    if voff:
        a("s_add_u32 s%d, s%d, %d" % (sT0, sT0, voff))
        a("s_mov_b32 s%d, %d" % (SV_ + 2, 0))
        a("s_sub_u32 s%d, %d, s%d" % (SV_ + 2, H * HEADB, sT0))
        a("s_min_u32 s%d, s%d, %d" % (SV_ + 2, SV_ + 2, HEADB))
    a("s_add_u32 s%d, s8, s%d" % (SV_, sT0))
    a("s_addc_u32 s%d, s9, 0" % (SV_ + 1))
    a("s_add_u32 s%d, s4, s%d" % (SQ_, sT1))
    a("s_addc_u32 s%d, s5, 0" % (SQ_ + 1))

    def loads(which, r):
        srd = SK_ if which == "K" else SV_
        f = vK if which == "K" else vV
        for g in range(G):
            for c in range(3):
                reg = f(r, g, c)
                a("buffer_load_dwordx4 v[%d:%d], v%d, s[%d:%d], s%d offen offset:%d%s"
                  % (reg, reg + 3, vOff, srd, srd + 3, sNext, g * 8 * ROWB + c * (1024 if lin else 128), pol))

    def advance():
        if nst:
            a("s_sub_u32 s%d, s%d, 1" % (sTc, sTc))
            a("s_cmp_eq_u32 s%d, 0" % sTc)
            a("s_cselect_b32 s%d, s%d, s%d" % (sT0, sStepJ, sStep))
            a("s_cselect_b32 s%d, s%d, s%d" % (sTc, sTpb, sTc))
            a("s_add_u32 s%d, s%d, s%d" % (sNext, sNext, sT0))
            a("s_cmp_ge_u32 s%d, s%d" % (sNext, sEnd))
            a("s_cselect_b32 s%d, s%d, 0" % (sT0, sWr))
            a("s_sub_u32 s%d, s%d, s%d" % (sNext, sNext, sT0))
        else:
            a("s_add_u32 s%d, s%d, %d" % (sNext, sNext, TILEB))
        if l2test:
            a("s_and_b32 s%d, s%d, %d" % (sNext, sNext, l2test))

    def qloads():
        for c in range(3):
            a("buffer_load_dwordx4 v[%d:%d], v%d, s[%d:%d], 0 offen offset:%d"
              % (vQ + 4 * c, vQ + 4 * c + 3, vQoff, SQ_, SQ_ + 3, c * 128))
    qloads()
    for r in range(R):
        loads("K", r)
        loads("V", r)
        advance()
    stamp(1)
    a("s_atomic_add s%d, s[12:13], s%d glc" % (sZ, sDo))
    if BS:
        assert BS > nseg
    elif (skew & 1) and not nst:
        a("s_cmp_lg_u32 s%d, 0" % sXc)
        a("s_cbranch_scc1 L_nowrap0")
        a("s_sub_u32 s%d, s%d, %d" % (sNext, sNext, S * TILEB))
        a.label("L_nowrap0")
    a("s_mov_b32 s%d, 0x%08x" % (sC, CSCALE))
    a("s_mov_b32 s%d, s10" % SO_)
    a("s_mov_b32 s%d, s11" % (SO_ + 1))
    a("s_mov_b32 s%d, %d" % (SO_ + 2, H * ROWB))
    a("s_mov_b32 s%d, 0x20000" % (SO_ + 3))
    a("s_mov_b32 s%d, s14" % SW_)
    a("s_mov_b32 s%d, s15" % (SW_ + 1))
    a("s_mov_b32 s%d, %d" % (SW_ + 2, WGS * 1024 + (WGS * 64 if stamps else 0)))
    a("s_mov_b32 s%d, 0x20000" % (SW_ + 3))
    a("s_lshl_b32 s%d, s%d, 8" % (sTo, sH))
    a("s_add_u32 s%d, s%d, %d" % (sTo, sTo, CB))
    a("s_mul_i32 s%d, s%d, %d" % (sRot, sH, ((N1 if BIG > 1 else NCH) // H) if skew & 2 else 0))
    a("s_mov_b32 s%d, 0" % sR)
    a("s_mov_b32 s%d, 0" % sIt)
    a("s_mov_b32 s%d, 2" % sEv)
    a("s_mov_b32 s%d, 0" % sDone)
    a("s_mov_b32 s%d, 0" % sB)
    assert niter >= 16
    a("s_and_b32 s%d, s2, 7" % sX)
    a("s_add_u32 s%d, s%d, %d" % (sX, sX, niter - 10))
    a("s_mov_b32 s%d, %d" % (sCnt, nstat))
    a("s_lshl_b32 s%d, s%d, 13" % (sT0, sH))
    for i in range(SPL):
        a("s_add_u32 s%d, s%d, %d" % (sT1, sJ, i))
        a("s_and_b32 s%d, s%d, 7" % (sT1, sT1))
        a("s_lshl_b32 s%d, s%d, 10" % (sT1, sT1))
        a("s_add_u32 s%d, s%d, s%d" % (sRo + i, sT1, sT0))
    a("s_mul_i32 s%d, s%d, %d" % (sOo, sH, ROWB))
    a("v_lshlrev_b32 v%d, 4, v0" % vRec)
    a("v_and_b32 v%d, 16, v0" % vF)
    a("v_lshrrev_b32 v%d, 1, v%d" % (vF, vF))
    a("v_add_u32 v%d, v%d, v%d" % (vT, vQoff, vF))
    a("v_lshrrev_b32 v%d, 5, v0" % vF)
    a("v_lshl_add_u32 v%d, v%d, 7, v%d" % (vOa, vF, vT))
    a("v_lshl_add_u32 v%d, v%d, 2, v%d" % (vOb, vF, vT))
    a("v_and_b32 v%d, 1, v%d" % (vT, vM))
    a("v_lshlrev_b32 v%d, 4, v%d" % (vT, vT))
    a("v_mov_b32 v%d, 0xffff" % vF)
    a("v_lshlrev_b32 v%d, v%d, v%d" % (vF, vT, vF))
    a("v_lshrrev_b32 v%d, 1, v%d" % (vT, vM))
    for r in range(4):
        a("v_cmp_eq_u32 vcc, %d, v%d" % (r, vT))
        a.nop(2)
        a("v_cndmask_b32 v%d, 0, v%d, vcc" % (vMask + r, vF))
    a("v_mov_b32 v%d, 0xff800000" % vM)
    a("v_mov_b32 v%d, 0" % vMC)
    a("v_mov_b32 v%d, 0" % vL)
    for i in range(12):
        a("v_mov_b32 v%d, 0" % (vAcc + i))
    stamp(2)
    if ms:
        for i in (3, 4, 5):
            a("s_mov_b32 s%d, 0" % (72 + 2 * i))

    rare = []
    def tile(r):
        tag = len(rare)
        a("s_waitcnt vmcnt(%d)" % full)
        if G == 1:
            for dw in range(4):
                for c in range(3):
                    src2 = "0" if dw == 0 else "v%d" % (vS + c)
                    a("v_dot2_f32_bf16 v%d, v%d, v%d, %s" % (vS + c, vK(r, 0, c) + dw, vQ + 4 * c + dw, src2))
            loads("K", r)
            a("v_add_f32 v%d, v%d, v%d" % (vS, vS, vS + 1))
            a("v_add_f32 v%d, v%d, v%d" % (vS, vS, vS + 2))
            a.nop(2)
        else:
            for c in range(3):
                for dw in range(4):
                    for g in range(G):
                        src2 = "0" if (c == 0 and dw == 0) else "v%d" % (vS + g)
                        a("v_dot2_f32_bf16 v%d, v%d, v%d, %s" % (vS + g, vK(r, g, c) + dw, vQ + 4 * c + dw, src2))
            loads("K", r)
        for mod in ("quad_perm:[1,0,3,2]", "quad_perm:[2,3,0,1]", "row_half_mirror"):
            for g in range(G):
                a("v_add_f32_dpp v%d, v%d, v%d %s row_mask:0xf bank_mask:0xf" % (vS + g, vS + g, vS + g, mod))
            if mod != "row_half_mirror":
                a.nop(max(0, 2 - (G - 1)))
        if G == 1:
            tm = vS
        else:
            a("v_max_f32 v%d, v%d, v%d" % (vT, vS, vS + 1)); tm = vT
        a("v_cmp_gt_f32 vcc, v%d, v%d" % (tm, vM))
        a("s_cbranch_vccnz L_rare%d" % tag)
        a.label("L_back%d" % tag)
        rare.append(tm)
        for g in range(G):
            a("v_fma_f32 v%d, v%d, s%d, -v%d" % (vS + g, vS + g, sC, vMC))
        for g in range(G):
            a("v_exp_f32 v%d, v%d" % (vS + g, vS + g))
        if G == 1:
            a.nop(1)
        for g in range(G):
            a("v_add_f32 v%d, v%d, v%d" % (vL, vL, vS + g))
        for g in range(G):
            a("v_cvt_pk_bf16_f32 v%d, v%d, v%d" % (vS + g, vS + g, vS + g))
        for g in range(G):
            for q in range(4):
                a("v_and_b32 v%d, v%d, v%d" % (vA + 4 * g + q, vS + g, vMask + q))
        a("s_waitcnt vmcnt(%d)" % full)
        a.nop(1)
        for g in range(G):
            for c in range(3):
                a("v_mfma_f32_16x16x32_bf16 v[%d:%d], v[%d:%d], v[%d:%d], v[%d:%d]"
                  % (vAcc + 4 * c, vAcc + 4 * c + 3, vA + 4 * g, vA + 4 * g + 3,
                     vV(r, g, c), vV(r, g, c) + 3, vAcc + 4 * c, vAcc + 4 * c + 3))
        loads("V", r)
        advance()

    a.raw(".p2align 6")
    a.label("L_loop")
    a("s_add_u32 s%d, s%d, 1" % (sIt, sIt))
    a("s_cmp_eq_u32 s%d, s%d" % (sIt, sEv))
    a("s_cbranch_scc1 L_event")
    for b in range(nseg):
        a.label("L_seg%d" % b)
        a("s_cmp_lg_u32 s%d, %d" % (sCnt, lead))
        a("s_cbranch_scc1 L_nr%d" % b)
        a("s_cmp_lg_u32 s%d, 0" % sDone)
        a("s_cbranch_scc1 L_nr%d" % b)
        a("s_waitcnt lgkmcnt(0)")
        a("s_cmp_ge_u32 s%d, 0x10000" % sR)
        a("s_cbranch_scc0 L_chk%d" % b)
        a.label("L_req%d" % b)
        a("s_mov_b32 s%d, 1" % sTk)
        a("s_atomic_add s%d, s[14:15], s%d glc" % (sTk, sTo))
        a.label("L_nr%d" % b)
        for t in range(CH):
            tile(b * CH + t)
        nxt = "L_loop" if b == nseg - 1 else "L_seg%d" % (b + 1)
        a("s_cmp_gt_u32 s%d, 1" % sCnt)
        a("s_cbranch_scc0 L_dyn%d" % b)
        a("s_sub_u32 s%d, s%d, 1" % (sCnt, sCnt))
        if BS:
            a("s_sub_u32 s%d, s%d, 1" % (sXc, sXc))
            a("s_cmp_lg_u32 s%d, 0" % sXc)
            a("s_cbranch_scc1 %s" % nxt)
            a("s_mov_b32 s%d, %d" % (sXc, BS))
            a("s_add_u32 s%d, s%d, s%d" % (sNext, sNext, sStep))
            a("s_sub_u32 s%d, s%d, %d" % (sT0, sNext, S * TILEB))
            a("s_cmp_ge_u32 s%d, s%d" % (sNext, sEnd))
            a("s_cselect_b32 s%d, s%d, s%d" % (sNext, sT0, sNext))
        elif (skew & 1) and not nst:
            a("s_sub_u32 s%d, s%d, 1" % (sXc, sXc))
            a("s_cmp_lg_u32 s%d, 0" % sXc)
            a("s_cbranch_scc1 %s" % nxt)
            a("s_sub_u32 s%d, s%d, %d" % (sNext, sNext, S * TILEB))
        if b == nseg - 1:
            a("s_branch L_loop")
    for b in range(nseg):
        nxt = "L_loop" if b == nseg - 1 else "L_seg%d" % (b + 1)
        a.label("L_dyn%d" % b)
        a("s_cmp_lg_u32 s%d, 0" % sDone)
        a("s_cbranch_scc1 L_fin")
        if nst:
            a("v_mov_b32 v%d, v%d" % (vOff, vOffP))
            a("s_mov_b32 s%d, %d" % (sStep, TILEB))
            a("s_mov_b32 s%d, %d" % (sStepJ, TILEB))
            a("s_mov_b32 s%d, -1" % sEnd)
        a("s_waitcnt lgkmcnt(0)")
        a("s_cmp_ge_u32 s%d, %d" % (sTk, NTK))
        a("s_cbranch_scc1 L_last%d" % b)
        if BIG > 1:
            a("s_mov_b32 s%d, -1" % sXc)
            a("s_cmp_ge_u32 s%d, %d" % (sTk, N1))
            a("s_cbranch_scc1 L_small%d" % b)
            a("s_add_u32 s%d, s%d, s%d" % (sTk, sTk, sRot))
            a("s_sub_u32 s%d, s%d, %d" % (sT0, sTk, N1))
            a("s_cmp_ge_u32 s%d, %d" % (sTk, N1))
            a("s_cselect_b32 s%d, s%d, s%d" % (sTk, sT0, sTk))
            a("s_mul_i32 s%d, s%d, %d" % (sNext, sTk, BIG * CH * TILEB))
            a("s_add_u32 s%d, s%d, %d" % (sNext, sNext, DYNBASE))
            a("s_mov_b32 s%d, %d" % (sCnt, BIG))
            a("s_branch %s" % nxt)
            a.label("L_small%d" % b)
            a("s_mul_i32 s%d, s%d, %d" % (sNext, sTk, SM * CH * TILEB))
            a("s_add_u32 s%d, s%d, %d" % (sNext, sNext, DYNBASE + N1 * (BIG - SM) * CH * TILEB))
            if SM > 1:
                a("s_mov_b32 s%d, %d" % (sCnt, SM))
            a("s_branch %s" % nxt)
        else:
            if skew & 2:
                a("s_add_u32 s%d, s%d, s%d" % (sTk, sTk, sRot))
                a("s_sub_u32 s%d, s%d, %d" % (sT0, sTk, NCH))
                a("s_cmp_ge_u32 s%d, %d" % (sTk, NCH))
                a("s_cselect_b32 s%d, s%d, s%d" % (sTk, sT0, sTk))
            a("s_mul_i32 s%d, s%d, %d" % (sNext, sTk, CH * TILEB))
            a("s_add_u32 s%d, s%d, %d" % (sNext, sNext, DYNBASE))
            a("s_branch %s" % nxt)
        a.label("L_last%d" % b)
        stamp(6)
        a("s_mov_b32 s%d, 0" % (SK_ + 2))
        a("s_mov_b32 s%d, 0" % (SV_ + 2))
        a("s_mov_b32 s%d, 0" % sNext)
        a("s_mov_b32 s%d, -1" % sXc)
        a("s_mov_b32 s%d, 1" % sDone)
        a("s_mov_b32 s%d, %d" % (sCnt, nseg))
        if fast and early:
            a("s_add_u32 s%d, s%d, 128" % (sTo, sTo))
            a("s_mov_b32 s%d, 1" % sTk)
            a("s_atomic_add s%d, s[14:15], s%d glc" % (sTk, sTo))
        a("s_branch %s" % nxt)
        a.label("L_chk%d" % b)
        a("s_sleep 2")
        a("s_mov_b32 s%d, 0" % sR)
        a("s_atomic_add s%d, s[12:13], s%d glc" % (sR, sDo))
        a("s_add_u32 s%d, s%d, 1" % (sB, sB))
        a("s_waitcnt lgkmcnt(0)")
        a("s_cmp_ge_u32 s%d, 0x10000" % sB)
        a("s_cbranch_scc1 L_req%d" % b)
        a("s_cmp_ge_u32 s%d, 0x10000" % sR)
        a("s_cbranch_scc0 L_chk%d" % b)
        a("s_branch L_req%d" % b)
    a.label("L_event")
    a("s_cmp_eq_u32 s%d, 2" % sIt)
    a("s_cbranch_scc1 L_elect")
    a("s_cmp_eq_u32 s%d, 4" % sIt)
    a("s_cbranch_scc1 L_flag")
    a("s_atomic_add s%d, s[12:13], s%d glc" % (sR, sDo))
    a("s_branch L_seg0")
    a.label("L_elect")
    a("s_mov_b32 s%d, s%d" % (sEv, sX))
    a("s_waitcnt lgkmcnt(0)")
    a("s_cmp_lg_u32 s%d, 0" % sZ)
    a("s_cbranch_scc1 L_seg0")
    a("s_add_u32 s%d, s%d, 128" % (sT0, sTo))
    a("s_mov_b32 s%d, 0" % sTk)
    a("s_atomic_swap s%d, s[14:15], s%d glc" % (sZ, sTo))
    a("s_atomic_swap s%d, s[14:15], s%d glc" % (sTk, sT0))
    if fast:
        for q in range(4):
            a("v_mov_b32 v%d, -1" % (vSent + q))
        for i in range(SPL):
            a("buffer_store_dwordx4 v[%d:%d], v%d, s[%d:%d], s%d offen sc1"
              % (vSent, vSent + 3, vRec, SW_, SW_ + 3, sRo + i))
    a("s_mov_b32 s%d, 4" % sEv)
    a("s_branch L_seg0")
    a.label("L_flag")
    a("s_waitcnt vmcnt(0) lgkmcnt(0)")
    a("s_mov_b32 s%d, 0x10000" % sZ)
    a("s_atomic_add s%d, s[12:13], s%d glc" % (sZ, sDo))
    a("s_mov_b32 s%d, s%d" % (sEv, sX))
    a("s_branch L_seg0")

    a.label("L_fin")
    stamp(7)
    Z = vA
    RB = 48
    def recloads():
        for i in range(1, SPL):
            a("buffer_load_dwordx4 v[%d:%d], v%d, s[%d:%d], s%d offen sc1"
              % (RB + 4 * (i - 1), RB + 4 * (i - 1) + 3, vRec, SW_, SW_ + 3, sRo + i))
    if fast and early:
        a("s_waitcnt lgkmcnt(0)")
        a("s_cmp_lg_u32 s%d, %d" % (sTk, SPL - 1))
        a("s_cbranch_scc1 L_nold")
        recloads()
        a.label("L_nold")
        a("v_add_f32_dpp v%d, v%d, v%d row_mirror row_mask:0xf bank_mask:0xf" % (vL, vL, vL))
        a.nop(2)
    else:
        if fast:
            recloads()
        a("v_add_f32_dpp v%d, v%d, v%d row_mirror row_mask:0xf bank_mask:0xf" % (vL, vL, vL))
        a("s_add_u32 s%d, s%d, 128" % (sTo, sTo))
        a("s_mov_b32 s%d, 1" % sTk)
    a("v_add_f32_dpp v%d, v%d, v%d row_bcast:15 row_mask:0xa bank_mask:0xf" % (vL, vL, vL))
    a.nop(2)
    a("v_add_f32_dpp v%d, v%d, v%d row_bcast:31 row_mask:0xc bank_mask:0xf" % (vL, vL, vL))
    a.nop(1 if fast else 5)
    a("v_readlane_b32 s%d, v%d, 63" % (sM, vL))
    for r in range(4):
        a("v_permlane32_swap_b32 v%d, v%d" % (vAcc + r, vAcc + 4 + r))
    a("v_permlane32_swap_b32 v%d, v%d" % (vAcc + 8, vAcc + 10))
    a("v_permlane32_swap_b32 v%d, v%d" % (vAcc + 9, vAcc + 11))
    a("v_mov_b32 v%d, v%d" % (Z + 2, vM))
    a("v_mov_b32 v%d, s%d" % (Z + 3, sM))
    a("v_add_f32_dpp v%d, v%d, v%d row_ror:8 row_mask:0xf bank_mask:0xc" % (Z + 0, vAcc + 8, vAcc + 10))
    a("v_add_f32_dpp v%d, v%d, v%d row_ror:8 row_mask:0xf bank_mask:0xc" % (Z + 1, vAcc + 9, vAcc + 11))
    for r in range(4):
        a("v_add_f32_dpp v%d, v%d, v%d row_ror:8 row_mask:0xf bank_mask:0x3" % (Z + r, vAcc + 4 + r, vAcc + r))
    if stamps:
        a("s_memrealtime s[%d:%d]" % (sStamp + 2, sStamp + 3))
    a("s_mov_b32 s%d, 0" % sB)
    if fast and early:
        a("s_cmp_eq_u32 s%d, %d" % (sTk, SPL - 1))
        a("s_cbranch_scc1 L_last")
        a("buffer_store_dwordx4 v[%d:%d], v%d, s[%d:%d], s%d offen sc1" % (Z, Z + 3, vRec, SW_, SW_ + 3, sRo))
        a("s_branch %s" % ("L_stamp" if stamps else "L_end"))
        a.label("L_last")
    else:
        a("buffer_store_dwordx4 v[%d:%d], v%d, s[%d:%d], s%d offen sc1" % (Z, Z + 3, vRec, SW_, SW_ + 3, sRo))
        if not fast:
            a("s_waitcnt vmcnt(0)")
        a("s_atomic_add s%d, s[14:15], s%d glc" % (sTk, sTo))
        a("s_waitcnt lgkmcnt(0)")
        a("s_cmp_lg_u32 s%d, %d" % (sTk, SPL - 1))
        a("s_cbranch_scc1 %s" % ("L_stamp" if stamps else "L_end"))
    stamp(3)
    if fast:
        a("s_waitcnt vmcnt(%d)" % (0 if early else 1))
        a.label("L_poll")
        a("v_max3_u32 v%d, v%d, v%d, v%d" % (vF, RB, RB + 1, RB + 2))
        a("v_max3_u32 v%d, v%d, v%d, v%d" % (vT, RB + 3, RB + 4, RB + 5))
        for i in range(6, 26, 4):
            a("v_max3_u32 v%d, v%d, v%d, v%d" % (vF, vF, RB + i, RB + i + 1))
            a("v_max3_u32 v%d, v%d, v%d, v%d" % (vT, vT, RB + i + 2, RB + i + 3))
        a("v_max3_u32 v%d, v%d, v%d, v%d" % (vF, vF, RB + 26, RB + 27))
        a("v_max_u32 v%d, v%d, v%d" % (vF, vF, vT))
        a("v_cmp_eq_u32 vcc, -1, v%d" % vF)
        a("s_cbranch_vccz L_got")
        a("s_add_u32 s%d, s%d, 1" % (sB, sB))
        a("s_cmp_ge_u32 s%d, 0x10000" % sB)
        a("s_cbranch_scc1 L_got")
        recloads()
        a("s_waitcnt vmcnt(0)")
        a("s_branch L_poll")
        a.label("L_got")
    else:
        recloads()
        a("s_waitcnt vmcnt(0)")
    stamp(4)
    rec = [Z] + [RB + 4 * i for i in range(SPL - 1)]
    FB = 80
    a("v_max3_f32 v%d, v%d, v%d, v%d" % (vM, rec[0] + 2, rec[1] + 2, rec[2] + 2))
    a("v_max3_f32 v%d, v%d, v%d, v%d" % (vMC, rec[3] + 2, rec[4] + 2, rec[5] + 2))
    a("v_max3_f32 v%d, v%d, v%d, v%d" % (vM, vM, rec[6] + 2, rec[7] + 2))
    a("v_max_f32 v%d, v%d, v%d" % (vM, vM, vMC))
    a("v_mul_f32 v%d, s%d, v%d" % (vMC, sC, vM))
    for i in range(SPL):
        a("v_fma_f32 v%d, v%d, s%d, -v%d" % (FB + 2 * i, rec[i] + 2, sC, vMC))
    for i in range(SPL):
        a("v_exp_f32 v%d, v%d" % (FB + 2 * i, FB + 2 * i))
    a("v_mul_f32 v%d, v%d, v%d" % (vL, FB, rec[0] + 3))
    a("v_mul_f32 v%d, v%d, v%d" % (vT, FB + 2, rec[1] + 3))
    for i in range(2, SPL):
        a("v_fmac_f32 v%d, v%d, v%d" % (vL if i % 2 == 0 else vT, FB + 2 * i, rec[i] + 3))
    a("v_add_f32 v%d, v%d, v%d" % (vL, vL, vT))
    a("v_rcp_f32 v%d, v%d" % (vL, vL))
    a.nop(1)
    for i in range(SPL):
        a("v_mul_f32 v%d, v%d, v%d" % (FB + 2 * i, vL, FB + 2 * i))
    for i in range(SPL):
        a("v_mov_b32_dpp v%d, v%d row_ror:8 row_mask:0xf bank_mask:0x3" % (FB + 2 * i, FB + 2 * i))
    O = vAcc
    for i in range(SPL):
        for r in (0, 2):
            if i == 0:
                a("v_pk_mul_f32 v[%d:%d], v[%d:%d], v[%d:%d] op_sel_hi:[1,0]"
                  % (O + r, O + r + 1, rec[i] + r, rec[i] + r + 1, FB + 2 * i, FB + 2 * i + 1))
            else:
                a("v_pk_fma_f32 v[%d:%d], v[%d:%d], v[%d:%d], v[%d:%d] op_sel_hi:[1,0,1]"
                  % (O + r, O + r + 1, rec[i] + r, rec[i] + r + 1, FB + 2 * i, FB + 2 * i + 1, O + r, O + r + 1))
    a("v_cvt_pk_bf16_f32 v%d, v%d, v%d" % (O, O, O + 1))
    a("v_cvt_pk_bf16_f32 v%d, v%d, v%d" % (O + 1, O + 2, O + 3))
    a("s_mov_b32 exec_lo, 0x00ff00ff")
    a("s_mov_b32 exec_hi, 0x00ff00ff")
    a("buffer_store_dwordx2 v[%d:%d], v%d, s[%d:%d], s%d offen" % (O, O + 1, vOa, SO_, SO_ + 3, sOo))
    a("s_mov_b32 exec_lo, 0xff00ff00")
    a("s_mov_b32 exec_hi, 0xff00ff00")
    a("buffer_store_dword v%d, v%d, s[%d:%d], s%d offen offset:256" % (O, vOb, SO_, SO_ + 3, sOo))
    if ms:
        a("s_waitcnt vmcnt(0)")
        stamp(5)
    if stamps:
        a.label("L_stamp")
        a("s_mov_b64 exec, 1")
        a("s_getreg_b32 s%d, hwreg(HW_REG_XCC_ID)" % sM)
        a("s_lshl_b32 s%d, s%d, 4" % (sB, sB))
        a("s_or_b32 s%d, s%d, s%d" % (sM, sM, sB))
        a("s_waitcnt lgkmcnt(0)")
        a("v_mov_b32 v%d, s%d" % (vQ, sStamp))
        a("v_mov_b32 v%d, s%d" % (vQ + 1, sStamp + 2))
        a("v_mov_b32 v%d, s%d" % (vQ + 2, sM))
        a("v_mov_b32 v%d, s%d" % (vQ + 3, sIt))
        a("s_lshr_b32 s%d, s%d, 6" % (sM, sRo))
        a("s_add_u32 s%d, s%d, %d" % (sM, sM, WGS * 1024))
        a("buffer_store_dwordx4 v[%d:%d], off, s[%d:%d], s%d" % (vQ, vQ + 3, SW_, SW_ + 3, sM))
    if ms:
        for i in range(8):
            a("v_mov_b32 v%d, s%d" % (vQ + 4 + i, 72 + 2 * i))
        a("s_lshr_b32 s%d, s%d, 5" % (sM, sRo))
        a("s_add_u32 s%d, s%d, %d" % (sM, sM, WGS * 1024 + WGS * 16))
        a("buffer_store_dwordx4 v[%d:%d], off, s[%d:%d], s%d" % (vQ + 4, vQ + 7, SW_, SW_ + 3, sM))
        a("buffer_store_dwordx4 v[%d:%d], off, s[%d:%d], s%d offset:16" % (vQ + 8, vQ + 11, SW_, SW_ + 3, sM))
    a.label("L_end")
    a("s_endpgm")

    for tag, tm in enumerate(rare):
        a.label("L_rare%d" % tag)
        a("v_mov_b32 v%d, v%d" % (vF, tm))
        a.nop(2)
        a("v_max_f32_dpp v%d, v%d, v%d row_mirror row_mask:0xf bank_mask:0xf" % (vF, vF, vF))
        a.nop(2)
        a("v_max_f32_dpp v%d, v%d, v%d row_bcast:15 row_mask:0xa bank_mask:0xf" % (vF, vF, vF))
        a.nop(2)
        a("v_max_f32_dpp v%d, v%d, v%d row_bcast:31 row_mask:0xc bank_mask:0xf" % (vF, vF, vF))
        a.nop(2)
        a("v_readlane_b32 s%d, v%d, 63" % (sM, vF))
        a.nop(2)
        a("v_subrev_f32 v%d, s%d, v%d" % (vF, sM, vM))
        a("v_mov_b32 v%d, s%d" % (vM, sM))
        a("v_mul_f32 v%d, s%d, v%d" % (vF, sC, vF))
        a("v_mul_f32 v%d, s%d, v%d" % (vMC, sC, vM))
        a("v_exp_f32 v%d, v%d" % (vF, vF))
        a.nop(1)
        for i in range(12):
            a("v_mul_f32 v%d, v%d, v%d" % (vAcc + i, vF, vAcc + i))
        a("v_mul_f32 v%d, v%d, v%d" % (vL, vF, vL))
        a("s_branch L_back%d" % tag)

    a.raw('.section .rodata,"a"')
    a.raw(".p2align 6")
    a.raw(".amdhsa_kernel %s" % NAME)
    a.raw("  .amdhsa_next_free_vgpr %d" % nvgpr)
    a.raw("  .amdhsa_next_free_sgpr 100")
    a.raw("  .amdhsa_accum_offset %d" % ((nvgpr + 3) // 4 * 4))
    a.raw("  .amdhsa_group_segment_fixed_size 0")
    a.raw("  .amdhsa_kernarg_size 48")
    a.raw("  .amdhsa_user_sgpr_count 2")
    a.raw("  .amdhsa_user_sgpr_kernarg_segment_ptr 1")
    a.raw("  .amdhsa_system_sgpr_workgroup_id_x 1")
    a.raw(".end_amdhsa_kernel")
    return a.text()


if __name__ == "__main__":
    kw = {}
    out = sys.argv[1]
    for x in sys.argv[2:]:
        k, v = x.split("=")
        if v in ("True", "False"):
            v = v == "True"
        else:
            try:
                v = int(v)
            except ValueError:
                v = v.replace("+", " ")
        kw[k] = v
    open(out, "w").write(gen(**kw))
```

```python
import sys, math, struct
from gen import Asm, HEADER, NAME, H, SK, D, ROWB, HEADB, CSCALE

SPL = 8
WGS = 256
CB = 1 << 19
WSB = 1 << 20


def gen(G=1, R=4, CH=4, S=416, ra=12, rb=0, pa=-1, levels="8x12,8x6,8x3,8x2,8x1", policy="nt", lds=90000,
        stamps=False, ms=False, prog=None, novol=False, prot=True, voff=0):
    n = 3 * G
    TILEB = 8 * G * ROWB
    TH_ = SK // (8 * G)
    assert R % CH == 0 and S % CH == 0 and (2 * R - 1) * n <= 63
    nseg = R // CH
    SEGB = CH * TILEB
    NSS = S // CH
    NCH = (TH_ - S * SPL) // CH
    DYNBASE = S * SPL * TILEB
    lv = [tuple(int(y) for y in x.split("x")) for x in levels.split(",")]
    assert sum(c * z for c, z in lv) == NCH, (NCH, sum(c * z for c, z in lv))
    NTK = sum(c for c, z in lv)
    assert pa < 0 or pa * (H - 1) < NCH * CH
    nstat = NSS - nseg
    niter = nstat // nseg
    pol = (" " + policy) if policy else ""
    full = (2 * R - 1) * n

    sH, sJ = 40, 41
    sNext, sCnt, sC, sM, sT0, sT1, sT2 = 43, 44, 45, 46, 47, 48, 49
    sStamp = 50
    sTk, sBeg, sEnd = 54, 55, 56
    sDo, sR, sX, sZ, sXc, sRot, sIt, sEv, sDone, sB = 64, 65, 66, 67, 68, 69, 70, 71, 57, 58
    sF = 39
    CBp = 2
    sRo, sOo = 24, 36
    SK_, SV_, SQ_, SO_, SW_ = 16, 20, 60, 96, 32
    vOff, vQoff, vRec, vOa, vOb = 1, 3, 4, 18, 19
    vM, vMC, vL, vT, vF = 5, 6, 7, 8, 9
    vMask, vS, vQ, vAcc, vA = 10, 14, 20, 32, 44
    vD = (44 + 4 * G + 3) // 4 * 4
    def vK(r, g, c): return vD + r * 24 * G + (g * 3 + c) * 4
    def vV(r, g, c): return vD + r * 24 * G + 12 * G + (g * 3 + c) * 4
    vSent = max(vD + R * 24 * G, 96)
    nvgpr = vSent + 6
    assert nvgpr <= 256

    a = Asm()
    def stamp(i):
        if ms and not prog:
            a("s_memrealtime s[%d:%d]" % (72 + 2 * i, 73 + 2 * i))
    a.raw(HEADER.rstrip())
    a.raw("; @launch grid=(%d,1,1) block=(64,1,1) lds=%d" % (WGS, lds))
    a.raw('.amdgcn_target "amdgcn-amd-amdhsa--gfx950"')
    a.raw(".text")
    a.raw(".globl %s" % NAME)
    a.raw(".p2align 8")
    a.raw(".type %s,@function" % NAME)
    a.label(NAME)
    a("s_cmp_ge_u32 s2, %d" % WGS)
    a("s_cbranch_scc1 L_end")
    a("s_load_dwordx8 s[4:11], s[0:1], 0")
    a("s_load_dwordx4 s[12:15], s[0:1], 32")
    if stamps:
        a("s_memrealtime s[%d:%d]" % (sStamp, sStamp + 1))
    a("v_lshrrev_b32 v%d, 3, v0" % vF)
    a("v_and_b32 v%d, 7, v0" % vM)
    a("v_mul_u32_u24 v%d, %d, v%d" % (vF, ROWB, vF))
    a("v_lshlrev_b32 v%d, 4, v%d" % (vQoff, vM))
    a("v_add_u32 v%d, v%d, v%d" % (vOff, vQoff, vF))
    a("s_lshr_b32 s%d, s2, 3" % sH)
    a("s_and_b32 s%d, s2, 7" % sJ)
    a("s_mul_i32 s%d, s%d, %d" % (sT0, sH, ra))
    if rb:
        a("s_mul_i32 s%d, s%d, %d" % (sT1, sJ, rb))
        a("s_add_u32 s%d, s%d, s%d" % (sT0, sT0, sT1))
    if ra * (H - 1) + rb * (SPL - 1) >= S:
        a("s_mul_hi_u32 s%d, s%d, %d" % (sT1, sT0, (1 << 32) // S + 1))
        a("s_mul_i32 s%d, s%d, %d" % (sT1, sT1, S))
        a("s_sub_u32 s%d, s%d, s%d" % (sT0, sT0, sT1))
    a("s_mul_i32 s%d, s%d, %d" % (sBeg, sJ, S * TILEB))
    a("s_mul_i32 s%d, s%d, %d" % (sT0, sT0, TILEB))
    a("s_add_u32 s%d, s%d, %d" % (sEnd, sBeg, S * TILEB))
    a("s_add_u32 s%d, s%d, s%d" % (sNext, sBeg, sT0))
    a("s_mul_i32 s%d, s%d, %d" % (sT0, sH, HEADB))
    a("s_mul_i32 s%d, s%d, %d" % (sT1, sH, ROWB))
    for srd, sz in ((SK_, HEADB), (SV_, HEADB), (SQ_, ROWB)):
        a("s_mov_b32 s%d, %d" % (srd + 2, sz))
        a("s_mov_b32 s%d, 0x20000" % (srd + 3))
    a("s_lshl_b32 s%d, s%d, 3" % (sDo, sH))
    a("s_mov_b32 s%d, 1" % sZ)
    a("s_waitcnt lgkmcnt(0)")
    stamp(0)
    if not novol:
        a("s_cmp_lg_u32 s%d, 0" % sJ)
        a("s_cbranch_scc1 L_novol")
        a("s_atomic_add s%d, s[12:13], s%d glc" % (sZ, sDo))
        a.label("L_novol")
    a("s_add_u32 s%d, s6, s%d" % (SK_, sT0))
    a("s_addc_u32 s%d, s7, 0" % (SK_ + 1))
    if voff:
        a("s_add_u32 s%d, s%d, %d" % (sT0, sT0, voff))
        a("s_sub_u32 s%d, %d, s%d" % (SV_ + 2, H * HEADB, sT0))
        a("s_min_u32 s%d, s%d, %d" % (SV_ + 2, SV_ + 2, HEADB))
    a("s_add_u32 s%d, s8, s%d" % (SV_, sT0))
    a("s_addc_u32 s%d, s9, 0" % (SV_ + 1))
    a("s_add_u32 s%d, s4, s%d" % (SQ_, sT1))
    a("s_addc_u32 s%d, s5, 0" % (SQ_ + 1))

    def loads(which, r):
        srd = SK_ if which == "K" else SV_
        f = vK if which == "K" else vV
        for g in range(G):
            for c in range(3):
                reg = f(r, g, c)
                a("buffer_load_dwordx4 v[%d:%d], v%d, s[%d:%d], s%d offen offset:%d%s"
                  % (reg, reg + 3, vOff, srd, srd + 3, sNext, g * 8 * ROWB + c * 128, pol))
    def advance():
        a("s_add_u32 s%d, s%d, %d" % (sNext, sNext, TILEB))
        a("s_cmp_eq_u32 s%d, s%d" % (sNext, sEnd))
        a("s_cselect_b32 s%d, s%d, s%d" % (sNext, sBeg, sNext))

    for c in range(3):
        a("buffer_load_dwordx4 v[%d:%d], v%d, s[%d:%d], 0 offen offset:%d"
          % (vQ + 4 * c, vQ + 4 * c + 3, vQoff, SQ_, SQ_ + 3, c * 128))
    for r in range(R):
        loads("K", r)
        loads("V", r)
        advance()
    stamp(1)
    a("s_mov_b32 s%d, 0x%08x" % (sC, CSCALE))
    a("s_mov_b32 s%d, s10" % SO_)
    a("s_mov_b32 s%d, s11" % (SO_ + 1))
    a("s_mov_b32 s%d, %d" % (SO_ + 2, H * ROWB))
    a("s_mov_b32 s%d, 0x20000" % (SO_ + 3))
    a("s_mov_b32 s%d, s14" % SW_)
    a("s_mov_b32 s%d, s15" % (SW_ + 1))
    a("s_mov_b32 s%d, %d" % (SW_ + 2, WSB))
    a("s_mov_b32 s%d, 0x20000" % (SW_ + 3))
    assert niter >= 16
    a("s_add_u32 s%d, s%d, %d" % (sX, sJ, niter - 10))
    a("s_lshl_b32 s%d, s%d, 8" % (sT2, sH))
    a("s_add_u32 s%d, s%d, %d" % (sT2, sT2, CB))
    a("s_add_u32 s%d, s14, s%d" % (CBp, sT2))
    a("s_addc_u32 s%d, s15, 0" % (CBp + 1))
    a("s_mul_i32 s%d, s%d, %d" % (sRot, sH, (NCH * CH // H if pa < 0 else pa) * TILEB))
    for r_ in (sF, sR, sIt, sDone, sB):
        a("s_mov_b32 s%d, 0" % r_)
    a("s_mov_b32 s%d, %d" % (sCnt, nstat))
    a("s_lshl_b32 s%d, s%d, 13" % (sT0, sH))
    for i in range(SPL):
        a("s_add_u32 s%d, s%d, %d" % (sT1, sJ, i))
        a("s_and_b32 s%d, s%d, 7" % (sT1, sT1))
        a("s_lshl_b32 s%d, s%d, 10" % (sT1, sT1))
        a("s_add_u32 s%d, s%d, s%d" % (sRo + i, sT1, sT0))
    a("s_mul_i32 s%d, s%d, %d" % (sOo, sH, ROWB))
    a("v_lshlrev_b32 v%d, 4, v0" % vRec)
    a("v_and_b32 v%d, 16, v0" % vF)
    a("v_lshrrev_b32 v%d, 1, v%d" % (vF, vF))
    a("v_add_u32 v%d, v%d, v%d" % (vT, vQoff, vF))
    a("v_lshrrev_b32 v%d, 5, v0" % vF)
    a("v_lshl_add_u32 v%d, v%d, 7, v%d" % (vOa, vF, vT))
    a("v_lshl_add_u32 v%d, v%d, 2, v%d" % (vOb, vF, vT))
    a("v_and_b32 v%d, 1, v%d" % (vT, vM))
    a("v_lshlrev_b32 v%d, 4, v%d" % (vT, vT))
    a("v_mov_b32 v%d, 0xffff" % vF)
    a("v_lshlrev_b32 v%d, v%d, v%d" % (vF, vT, vF))
    a("v_lshrrev_b32 v%d, 1, v%d" % (vT, vM))
    for r in range(4):
        a("v_cmp_eq_u32 vcc, %d, v%d" % (r, vT))
        a.nop(2)
        a("v_cndmask_b32 v%d, 0, v%d, vcc" % (vMask + r, vF))
    a("v_mov_b32 v%d, 0xff800000" % vM)
    a("v_mov_b32 v%d, 0" % vMC)
    a("v_mov_b32 v%d, 0" % vL)
    for i in range(12):
        a("v_mov_b32 v%d, 0" % (vAcc + i))
    def init():
        for q in range(4):
            a("v_mov_b32 v%d, -1" % (vSent + q))
        a("v_mov_b32 v%d, 0" % (vSent + 4))
        a("v_lshlrev_b32 v%d, 2, v0" % (vSent + 5))
        a("buffer_store_dword v%d, v%d, s[%d:%d], s%d offen sc1" % (vSent + 4, vSent + 5, SW_, SW_ + 3, sT2))
        for i in range(SPL):
            a("buffer_store_dwordx4 v[%d:%d], v%d, s[%d:%d], s%d offen sc1"
              % (vSent, vSent + 3, vRec, SW_, SW_ + 3, sRo + i))
        a("s_mov_b32 s%d, 0x10000" % sR)
        a("s_mov_b32 s%d, 0x10000" % sZ)
        a("s_waitcnt vmcnt(0)")
        a("s_atomic_add s%d, s[12:13], s%d glc" % (sZ, sDo))
    a("s_waitcnt lgkmcnt(0)")
    a("s_cmp_lg_u32 s%d, 0" % sZ)
    a("s_cbranch_scc1 L_noinit")
    init()
    a("s_mov_b32 s%d, 0" % sX)
    a.label("L_noinit")
    stamp(2)
    if ms:
        for i in (range(8) if prog else (3, 4, 5)):
            a("s_mov_b32 s%d, 0" % (72 + 2 * i))

    rare = []
    def tile(r):
        tag = len(rare)
        a("s_waitcnt vmcnt(%d)" % full)
        if G == 1:
            for dw in range(4):
                for c in range(3):
                    src2 = "0" if dw == 0 else "v%d" % (vS + c)
                    a("v_dot2_f32_bf16 v%d, v%d, v%d, %s" % (vS + c, vK(r, 0, c) + dw, vQ + 4 * c + dw, src2))
            loads("K", r)
            a("v_add_f32 v%d, v%d, v%d" % (vS, vS, vS + 1))
            a("v_add_f32 v%d, v%d, v%d" % (vS, vS, vS + 2))
            a.nop(2)
        else:
            for c in range(3):
                for dw in range(4):
                    for g in range(G):
                        src2 = "0" if (c == 0 and dw == 0) else "v%d" % (vS + g)
                        a("v_dot2_f32_bf16 v%d, v%d, v%d, %s" % (vS + g, vK(r, g, c) + dw, vQ + 4 * c + dw, src2))
            loads("K", r)
        for mod in ("quad_perm:[1,0,3,2]", "quad_perm:[2,3,0,1]", "row_half_mirror"):
            for g in range(G):
                a("v_add_f32_dpp v%d, v%d, v%d %s row_mask:0xf bank_mask:0xf" % (vS + g, vS + g, vS + g, mod))
            if mod != "row_half_mirror":
                a.nop(max(0, 2 - (G - 1)))
        if G == 1:
            tm = vS
        else:
            a("v_max_f32 v%d, v%d, v%d" % (vT, vS, vS + 1)); tm = vT
        a("v_cmp_gt_f32 vcc, v%d, v%d" % (tm, vM))
        a("s_cbranch_vccnz L_rare%d" % tag)
        a.label("L_back%d" % tag)
        rare.append(tm)
        for g in range(G):
            a("v_fma_f32 v%d, v%d, s%d, -v%d" % (vS + g, vS + g, sC, vMC))
        for g in range(G):
            a("v_exp_f32 v%d, v%d" % (vS + g, vS + g))
        if G == 1:
            a.nop(1)
        for g in range(G):
            a("v_add_f32 v%d, v%d, v%d" % (vL, vL, vS + g))
        for g in range(G):
            a("v_cvt_pk_bf16_f32 v%d, v%d, v%d" % (vS + g, vS + g, vS + g))
        for g in range(G):
            for q in range(4):
                a("v_and_b32 v%d, v%d, v%d" % (vA + 4 * g + q, vS + g, vMask + q))
        a("s_waitcnt vmcnt(%d)" % full)
        a.nop(1)
        for g in range(G):
            for c in range(3):
                a("v_mfma_f32_16x16x32_bf16 v[%d:%d], v[%d:%d], v[%d:%d], v[%d:%d]"
                  % (vAcc + 4 * c, vAcc + 4 * c + 3, vA + 4 * g, vA + 4 * g + 3,
                     vV(r, g, c), vV(r, g, c) + 3, vAcc + 4 * c, vAcc + 4 * c + 3))
        loads("V", r)
        advance()

    a.raw(".p2align 6")
    a.label("L_loop")
    a("s_add_u32 s%d, s%d, 1" % (sIt, sIt))
    if prog:
        for i, it in enumerate(int(x) for x in str(prog).split(",")):
            a("s_cmp_lg_u32 s%d, %d" % (sIt, it))
            a("s_cbranch_scc1 L_pg%d" % i)
            a("s_memrealtime s[%d:%d]" % (72 + 2 * i, 73 + 2 * i))
            a.label("L_pg%d" % i)
    a("s_cmp_eq_u32 s%d, s%d" % (sIt, sX))
    a("s_cbranch_scc1 L_event")
    for b in range(nseg):
        a.label("L_seg%d" % b)
        a("s_cmp_lg_u32 s%d, 1" % sCnt)
        a("s_cbranch_scc0 L_rq%d" % b)
        a.label("L_nr%d" % b)
        for t in range(CH):
            tile(b * CH + t)
        nxt = "L_loop" if b == nseg - 1 else "L_seg%d" % (b + 1)
        a("s_cmp_gt_u32 s%d, 1" % sCnt)
        a("s_cbranch_scc0 L_dyn%d" % b)
        a("s_sub_u32 s%d, s%d, 1" % (sCnt, sCnt))
        if b == nseg - 1:
            a("s_branch L_loop")
    for b in range(nseg):
        nxt = "L_loop" if b == nseg - 1 else "L_seg%d" % (b + 1)
        a.label("L_rq%d" % b)
        a("s_cmp_lg_u32 s%d, 0" % sDone)
        a("s_cbranch_scc1 L_nr%d" % b)
        a("s_waitcnt lgkmcnt(0)")
        a("s_cmp_ge_u32 s%d, 0x10000" % sR)
        a("s_cbranch_scc0 L_chk%d" % b)
        a.label("L_req%d" % b)
        a("s_mov_b32 s%d, 1" % sTk)
        a("s_atomic_add s%d, s[%d:%d], 0x0 glc" % (sTk, CBp, CBp + 1))
        a("s_branch L_nr%d" % b)

        a.label("L_dyn%d" % b)
        a("s_cmp_lg_u32 s%d, 0" % sDone)
        a("s_cbranch_scc1 L_fin")
        a("s_waitcnt lgkmcnt(0)")
        a("s_cmp_ge_u32 s%d, %d" % (sTk, NTK))
        a("s_cbranch_scc1 L_last%d" % b)
        cumT, cumB, tab = 0, 0, []
        for c, z in lv:
            tab.append((cumT + c, z, (cumB - cumT * z) & 0xffffffff))
            cumT += c; cumB += c * z
        a("s_mov_b32 s%d, %d" % (sCnt, tab[-1][1]))
        a("s_mov_b32 s%d, 0x%x" % (sT0, tab[-1][2]))
        for lim, z, off in reversed(tab[:-1]):
            a("s_cmp_lt_u32 s%d, %d" % (sTk, lim))
            a("s_cselect_b32 s%d, %d, s%d" % (sCnt, z, sCnt))
            a("s_cselect_b32 s%d, 0x%x, s%d" % (sT0, off, sT0))
        a("s_mul_i32 s%d, s%d, s%d" % (sTk, sTk, sCnt))
        a("s_add_u32 s%d, s%d, s%d" % (sTk, sTk, sT0))
        a("s_mul_i32 s%d, s%d, %d" % (sNext, sTk, SEGB))
        a("s_add_u32 s%d, s%d, s%d" % (sNext, sNext, sRot))
        a("s_sub_u32 s%d, s%d, %d" % (sT0, sNext, NCH * SEGB))
        a("s_cmp_ge_u32 s%d, %d" % (sNext, NCH * SEGB))
        a("s_cselect_b32 s%d, s%d, s%d" % (sNext, sT0, sNext))
        a("s_add_u32 s%d, s%d, %d" % (sNext, sNext, DYNBASE))
        a("s_mov_b32 s%d, %d" % (sBeg, DYNBASE))
        a("s_mov_b32 s%d, %d" % (sEnd, HEADB))
        if stamps:
            a("s_add_u32 s%d, s%d, 1" % (sF, sF))
        a("s_branch %s" % nxt)
        a.label("L_last%d" % b)
        stamp(6)
        a("s_mov_b32 s%d, 0" % (SK_ + 2))
        a("s_mov_b32 s%d, 0" % (SV_ + 2))
        a("s_mov_b32 s%d, 0" % sNext)
        a("s_mov_b32 s%d, 1" % sDone)
        a("s_mov_b32 s%d, %d" % (sCnt, nseg))
        a("s_mov_b32 s%d, 1" % sTk)
        a("s_atomic_add s%d, s[%d:%d], 0x80 glc" % (sTk, CBp, CBp + 1))
        a("s_branch %s" % nxt)
        a.label("L_chk%d" % b)
        a("s_mov_b32 s%d, 1" % sR)
        a("s_atomic_add s%d, s[12:13], s%d glc" % (sR, sDo))
        a("s_waitcnt lgkmcnt(0)")
        a("s_cmp_lg_u32 s%d, 0" % sR)
        a("s_cbranch_scc1 L_spin%d" % b)
        init()
        a("s_waitcnt lgkmcnt(0)")
        a("s_branch L_req%d" % b)
        a.label("L_spin%d" % b)
        a("s_cmp_ge_u32 s%d, 0x10000" % sR)
        a("s_cbranch_scc1 L_req%d" % b)
        a("s_add_u32 s%d, s%d, 1" % (sB, sB))
        a("s_cmp_ge_u32 s%d, 0x10000" % sB)
        a("s_cbranch_scc1 L_giveup%d" % b)
        a("s_sleep 2")
        a("s_mov_b32 s%d, 0" % sR)
        a("s_atomic_add s%d, s[12:13], s%d glc" % (sR, sDo))
        a("s_waitcnt lgkmcnt(0)")
        a("s_branch L_spin%d" % b)
        a.label("L_giveup%d" % b)
        a("s_mov_b32 s%d, 0x10000" % sR)
        a("s_branch L_req%d" % b)
    a.label("L_event")
    a("s_load_dword s%d, s[12:13], s%d glc" % (sR, sDo))
    a("s_branch L_seg0")

    a.label("L_fin")
    stamp(7)
    Z = vA
    RB = 48
    def recloads():
        for i in range(1, SPL):
            a("buffer_load_dwordx4 v[%d:%d], v%d, s[%d:%d], s%d offen sc1"
              % (RB + 4 * (i - 1), RB + 4 * (i - 1) + 3, vRec, SW_, SW_ + 3, sRo + i))
    a("s_waitcnt lgkmcnt(0)")
    a("s_cmp_lg_u32 s%d, %d" % (sTk, SPL - 1))
    a("s_cbranch_scc1 L_nold")
    recloads()
    a.label("L_nold")
    a("v_add_f32_dpp v%d, v%d, v%d row_mirror row_mask:0xf bank_mask:0xf" % (vL, vL, vL))
    a.nop(2)
    a("v_add_f32_dpp v%d, v%d, v%d row_bcast:15 row_mask:0xa bank_mask:0xf" % (vL, vL, vL))
    a.nop(2)
    a("v_add_f32_dpp v%d, v%d, v%d row_bcast:31 row_mask:0xc bank_mask:0xf" % (vL, vL, vL))
    a.nop(1)
    a("v_readlane_b32 s%d, v%d, 63" % (sM, vL))
    for r in range(4):
        a("v_permlane32_swap_b32 v%d, v%d" % (vAcc + r, vAcc + 4 + r))
    a("v_permlane32_swap_b32 v%d, v%d" % (vAcc + 8, vAcc + 10))
    a("v_permlane32_swap_b32 v%d, v%d" % (vAcc + 9, vAcc + 11))
    a("v_mov_b32 v%d, v%d" % (Z + 2, vM))
    a("v_mov_b32 v%d, s%d" % (Z + 3, sM))
    a("v_add_f32_dpp v%d, v%d, v%d row_ror:8 row_mask:0xf bank_mask:0xc" % (Z + 0, vAcc + 8, vAcc + 10))
    a("v_add_f32_dpp v%d, v%d, v%d row_ror:8 row_mask:0xf bank_mask:0xc" % (Z + 1, vAcc + 9, vAcc + 11))
    for r in range(4):
        a("v_add_f32_dpp v%d, v%d, v%d row_ror:8 row_mask:0xf bank_mask:0x3" % (Z + r, vAcc + 4 + r, vAcc + r))
    if stamps:
        a("s_memrealtime s[%d:%d]" % (sStamp + 2, sStamp + 3))
    a("s_mov_b32 s%d, 0" % sB)
    a("s_cmp_eq_u32 s%d, %d" % (sTk, SPL - 1))
    a("s_cbranch_scc1 L_final")
    a("buffer_store_dwordx4 v[%d:%d], v%d, s[%d:%d], s%d offen sc1" % (Z, Z + 3, vRec, SW_, SW_ + 3, sRo))
    a("s_branch %s" % ("L_stamp" if stamps else "L_end"))
    a.label("L_final")
    stamp(3)
    a("s_waitcnt vmcnt(0)")
    a.label("L_poll")
    a("v_max3_u32 v%d, v%d, v%d, v%d" % (vF, RB, RB + 1, RB + 2))
    a("v_max3_u32 v%d, v%d, v%d, v%d" % (vT, RB + 3, RB + 4, RB + 5))
    for i in range(6, 26, 4):
        a("v_max3_u32 v%d, v%d, v%d, v%d" % (vF, vF, RB + i, RB + i + 1))
        a("v_max3_u32 v%d, v%d, v%d, v%d" % (vT, vT, RB + i + 2, RB + i + 3))
    a("v_max3_u32 v%d, v%d, v%d, v%d" % (vF, vF, RB + 26, RB + 27))
    a("v_max_u32 v%d, v%d, v%d" % (vF, vF, vT))
    a("v_cmp_eq_u32 vcc, -1, v%d" % vF)
    a("s_cbranch_vccz L_got")
    a("s_add_u32 s%d, s%d, 1" % (sB, sB))
    a("s_cmp_ge_u32 s%d, 0x10000" % sB)
    a("s_cbranch_scc1 L_got")
    recloads()
    a("s_waitcnt vmcnt(0)")
    a("s_branch L_poll")
    a.label("L_got")
    stamp(4)
    rec = [Z] + [RB + 4 * i for i in range(SPL - 1)]
    FB = 80
    a("v_max3_f32 v%d, v%d, v%d, v%d" % (vM, rec[0] + 2, rec[1] + 2, rec[2] + 2))
    a("v_max3_f32 v%d, v%d, v%d, v%d" % (vMC, rec[3] + 2, rec[4] + 2, rec[5] + 2))
    a("v_max3_f32 v%d, v%d, v%d, v%d" % (vM, vM, rec[6] + 2, rec[7] + 2))
    a("v_max_f32 v%d, v%d, v%d" % (vM, vM, vMC))
    a("v_mul_f32 v%d, s%d, v%d" % (vMC, sC, vM))
    for i in range(SPL):
        a("v_fma_f32 v%d, v%d, s%d, -v%d" % (FB + 2 * i, rec[i] + 2, sC, vMC))
    for i in range(SPL):
        a("v_exp_f32 v%d, v%d" % (FB + 2 * i, FB + 2 * i))
    a("v_mul_f32 v%d, v%d, v%d" % (vL, FB, rec[0] + 3))
    a("v_mul_f32 v%d, v%d, v%d" % (vT, FB + 2, rec[1] + 3))
    for i in range(2, SPL):
        a("v_fmac_f32 v%d, v%d, v%d" % (vL if i % 2 == 0 else vT, FB + 2 * i, rec[i] + 3))
    a("v_add_f32 v%d, v%d, v%d" % (vL, vL, vT))
    a("v_rcp_f32 v%d, v%d" % (vL, vL))
    a.nop(1)
    for i in range(SPL):
        a("v_mul_f32 v%d, v%d, v%d" % (FB + 2 * i, vL, FB + 2 * i))
    for i in range(SPL):
        a("v_mov_b32_dpp v%d, v%d row_ror:8 row_mask:0xf bank_mask:0x3" % (FB + 2 * i, FB + 2 * i))
    O = vAcc
    for i in range(SPL):
        for r in (0, 2):
            if i == 0:
                a("v_pk_mul_f32 v[%d:%d], v[%d:%d], v[%d:%d] op_sel_hi:[1,0]"
                  % (O + r, O + r + 1, rec[i] + r, rec[i] + r + 1, FB + 2 * i, FB + 2 * i + 1))
            else:
                a("v_pk_fma_f32 v[%d:%d], v[%d:%d], v[%d:%d], v[%d:%d] op_sel_hi:[1,0,1]"
                  % (O + r, O + r + 1, rec[i] + r, rec[i] + r + 1, FB + 2 * i, FB + 2 * i + 1, O + r, O + r + 1))
    a("v_cvt_pk_bf16_f32 v%d, v%d, v%d" % (O, O, O + 1))
    a("v_cvt_pk_bf16_f32 v%d, v%d, v%d" % (O + 1, O + 2, O + 3))
    a("s_mov_b32 exec_lo, 0x00ff00ff")
    a("s_mov_b32 exec_hi, 0x00ff00ff")
    a("buffer_store_dwordx2 v[%d:%d], v%d, s[%d:%d], s%d offen" % (O, O + 1, vOa, SO_, SO_ + 3, sOo))
    a("s_mov_b32 exec_lo, 0xff00ff00")
    a("s_mov_b32 exec_hi, 0xff00ff00")
    a("buffer_store_dword v%d, v%d, s[%d:%d], s%d offen offset:256" % (O, vOb, SO_, SO_ + 3, sOo))
    if ms:
        a("s_waitcnt vmcnt(0)")
        stamp(5)
    if stamps:
        a.label("L_stamp")
        a("s_mov_b64 exec, 1")
        a("s_getreg_b32 s%d, hwreg(HW_REG_XCC_ID)" % sM)
        a("s_lshl_b32 s%d, s%d, 4" % (sB, sF))
        a("s_or_b32 s%d, s%d, s%d" % (sM, sM, sB))
        a("s_waitcnt lgkmcnt(0)")
        a("v_mov_b32 v%d, s%d" % (vQ, sStamp))
        a("v_mov_b32 v%d, s%d" % (vQ + 1, sStamp + 2))
        a("v_mov_b32 v%d, s%d" % (vQ + 2, sM))
        a("v_mov_b32 v%d, s%d" % (vQ + 3, sIt))
        a("s_lshr_b32 s%d, s%d, 6" % (sM, sRo))
        a("s_add_u32 s%d, s%d, %d" % (sM, sM, WGS * 1024))
        a("buffer_store_dwordx4 v[%d:%d], off, s[%d:%d], s%d" % (vQ, vQ + 3, SW_, SW_ + 3, sM))
    if ms:
        for i in range(8):
            a("v_mov_b32 v%d, s%d" % (vQ + 4 + i, 72 + 2 * i))
        a("s_lshr_b32 s%d, s%d, 5" % (sM, sRo))
        a("s_add_u32 s%d, s%d, %d" % (sM, sM, WGS * 1024 + WGS * 16))
        a("buffer_store_dwordx4 v[%d:%d], off, s[%d:%d], s%d" % (vQ + 4, vQ + 7, SW_, SW_ + 3, sM))
        a("buffer_store_dwordx4 v[%d:%d], off, s[%d:%d], s%d offset:16" % (vQ + 8, vQ + 11, SW_, SW_ + 3, sM))
    a.label("L_end")
    a("s_endpgm")

    for tag, tm in enumerate(rare):
        a.label("L_rare%d" % tag)
        a("v_mov_b32 v%d, v%d" % (vF, tm))
        a.nop(2)
        a("v_max_f32_dpp v%d, v%d, v%d row_mirror row_mask:0xf bank_mask:0xf" % (vF, vF, vF))
        a.nop(2)
        a("v_max_f32_dpp v%d, v%d, v%d row_bcast:15 row_mask:0xa bank_mask:0xf" % (vF, vF, vF))
        a.nop(2)
        a("v_max_f32_dpp v%d, v%d, v%d row_bcast:31 row_mask:0xc bank_mask:0xf" % (vF, vF, vF))
        a.nop(2)
        a("v_readlane_b32 s%d, v%d, 63" % (sM, vF))
        a.nop(2)
        a("v_subrev_f32 v%d, s%d, v%d" % (vF, sM, vM))
        a("v_mov_b32 v%d, s%d" % (vM, sM))
        a("v_mul_f32 v%d, s%d, v%d" % (vF, sC, vF))
        a("v_mul_f32 v%d, s%d, v%d" % (vMC, sC, vM))
        a("v_exp_f32 v%d, v%d" % (vF, vF))
        a.nop(1)
        for i in range(12):
            a("v_mul_f32 v%d, v%d, v%d" % (vAcc + i, vF, vAcc + i))
        a("v_mul_f32 v%d, v%d, v%d" % (vL, vF, vL))
        a("s_branch L_back%d" % tag)

    a.raw('.section .rodata,"a"')
    a.raw(".p2align 6")
    a.raw(".amdhsa_kernel %s" % NAME)
    a.raw("  .amdhsa_next_free_vgpr %d" % nvgpr)
    a.raw("  .amdhsa_next_free_sgpr 100")
    a.raw("  .amdhsa_accum_offset %d" % ((nvgpr + 3) // 4 * 4))
    a.raw("  .amdhsa_group_segment_fixed_size 0")
    a.raw("  .amdhsa_kernarg_size 48")
    a.raw("  .amdhsa_user_sgpr_count 2")
    a.raw("  .amdhsa_user_sgpr_kernarg_segment_ptr 1")
    a.raw("  .amdhsa_system_sgpr_workgroup_id_x 1")
    a.raw(".end_amdhsa_kernel")
    return a.text()


if __name__ == "__main__":
    kw = {}
    out = sys.argv[1]
    for x in sys.argv[2:]:
        k, v = x.split("=")
        if v in ("True", "False"):
            v = v == "True"
        else:
            try:
                v = int(v)
            except ValueError:
                v = v.replace("+", " ")
        kw[k] = v
    open(out, "w").write(gen(**kw))
```
